```python
import torch

def _softmax(x, axis=-1):
    return torch.softmax(x, dim=axis)
def _gelu(x):
    return torch.nn.functional.gelu(x, approximate="tanh")
def _silu(x):
    return torch.nn.functional.silu(x)
def _sigmoid(x):
    return torch.sigmoid(x)
def _layernorm(x, axis=-1, eps=1e-5):
    m = x.mean(dim=axis, keepdim=True)
    v = x.var(dim=axis, keepdim=True, unbiased=False)
    return (x - m) / torch.sqrt(v + eps)
def _scatter_add(tgt, idx, src, axis=0):
    return tgt.clone().index_add_(axis, idx, src)
def _segment_sum(src, seg, n):
    out = torch.zeros((n,) + src.shape[1:], dtype=src.dtype)
    return out.index_add_(0, seg, src)
def _pad(x, pw):
    flat = tuple(v for pair in reversed(pw) for v in pair)
    return torch.nn.functional.pad(x, flat)

kernel_name = 'standalone__modern_conv_block_slak__vision'

def setup_inputs():

    _w = (lambda a: (lambda t: t.to(torch.bfloat16) if t.is_floating_point() else t)(torch.as_tensor(a)))
    H = W = 512
    C = 96
    K = 3
    return {
        "x": _w((lambda *s: torch.randn(*s, dtype=torch.bfloat16) * 0.05)(1, H, W, C)),
        "dw": _w((lambda *s: torch.randn(*s, dtype=torch.bfloat16) * 0.05)(K, K, C)),
        "w1": _w((lambda *s: torch.randn(*s, dtype=torch.bfloat16) * 0.05)(C, 4 * C)),
        "w2": _w((lambda *s: torch.randn(*s, dtype=torch.bfloat16) * 0.05)(4 * C, C)),
        "grn_g": _w((lambda *s: torch.randn(*s, dtype=torch.bfloat16) * 0.05)(4 * C)),
        "grn_b": _w((lambda *s: torch.randn(*s, dtype=torch.bfloat16) * 0.05)(4 * C)),
    }

def reference(x, dw, w1, w2, grn_g, grn_b):
    B, H, W, C = x.shape
    K = dw.shape[0]
    pad = K // 2
    xp = _pad(x, ((0,0),(pad,pad),(pad,pad),(0,0)))
    out = torch.zeros_like(x)
    for i in range(K):
        for j in range(K):
            out = out + xp[:, i:i+H, j:j+W, :] * dw[i, j][None, None, None, :]
    h = _layernorm(out, axis=-1)
    h = _gelu(h @ w1)
    gx = torch.sqrt((h * h).sum(axis=(1, 2), keepdims=True) + 1e-6)
    nx = gx / (gx.mean(axis=-1, keepdims=True) + 1e-6)
    h = grn_g[None, None, None, :] * (h * nx) + grn_b[None, None, None, :] + h
    return x + h @ w2
```

```python
import re
RE_V = re.compile(r'(?<![a-z_0-9])([va])(?:\[(\d+):(\d+)\]|(\d+)(?![\w]))')
TRANS = ('v_exp_f32','v_rcp_f32','v_rsq_f32','v_sqrt_f32','v_log_f32','v_sin_f32','v_cos_f32','v_rcp_iflag_f32')
def regs_of(tok):
    out = []
    for m in RE_V.finditer(tok):
        base = 0 if m.group(1) == 'v' else 1000
        if m.group(2) is not None: out += [base + r for r in range(int(m.group(2)), int(m.group(3)) + 1)]
        else: out.append(base + int(m.group(4)))
    return out
def split_ops(s):
    ops = []; depth = 0; cur = ''
    for ch in s:
        if ch == '[': depth += 1
        if ch == ']': depth -= 1
        if ch == ',' and depth == 0: ops.append(cur.strip()); cur = ''
        else: cur += ch
    if cur.strip(): ops.append(cur.strip())
    return ops
class Ins:
    __slots__ = ('text','op','kind','defs','uses','passes','srcc','sdefs','suses')
def classify(text):
    I = Ins(); I.text = text
    parts = text.split(None, 1); op = parts[0]; I.op = op
    ops = split_ops(parts[1]) if len(parts) > 1 else []
    I.defs = []; I.uses = []; I.passes = 0; I.srcc = []
    if op.startswith('v_mfma') or op.startswith('v_smfmac'):
        I.kind = 'mfma'; I.defs = regs_of(ops[0])
        I.passes = 8 if '32x32' in op else 4
        if op.startswith('v_mfma'):
            I.uses = regs_of(ops[1]) + regs_of(ops[2]); I.srcc = regs_of(ops[3].split()[0])
        else:
            I.uses = regs_of(ops[1]) + regs_of(ops[2]) + regs_of(ops[3].split()[0]); I.srcc = list(I.defs)
    elif op.startswith('ds_'):
        if op.startswith('ds_read') or op.startswith('ds_bpermute') or op.startswith('ds_swizzle') or '_rtn' in op:
            I.kind = 'ds_r'; I.defs = regs_of(ops[0]); I.uses = sum((regs_of(o.split()[0]) for o in ops[1:]), [])
        else:
            I.kind = 'ds_w'; I.uses = sum((regs_of(o.split()[0]) for o in ops), [])
    elif op.startswith('buffer_') or op.startswith('global_'):
        if op in ('buffer_wbl2', 'buffer_inv'):
            I.kind = 'vm_w'
        elif '_load' in op:
            if text.rstrip().endswith(' lds') or ' lds ' in text:
                I.kind = 'vm_w'; I.uses = regs_of(ops[0])
            else:
                I.kind = 'vm_r'; I.defs = regs_of(ops[0]); I.uses = sum((regs_of(o.split()[0]) for o in ops[1:]), [])
        elif 'atomic' in op and ' sc0' in text:
            I.kind = 'vm_r'; I.defs = regs_of(ops[0]); I.uses = sum((regs_of(o.split()[0]) for o in ops), [])
        else:
            I.kind = 'vm_w'; I.uses = sum((regs_of(o.split()[0]) for o in ops), [])
    elif op.startswith('v_'):
        I.kind = 'trans' if op.replace('_e32','').replace('_e64','') in TRANS else 'valu'
        if op.startswith('v_cmp'):
            I.uses = sum((regs_of(o) for o in ops[1:]), [])
        elif op.startswith('v_readfirstlane') or op.startswith('v_readlane'):
            I.uses = regs_of(ops[1])
        elif op.startswith('v_permlane') and 'swap' in op:
            I.defs = regs_of(ops[0]) + regs_of(ops[1]); I.uses = list(I.defs)
        else:
            I.defs = regs_of(ops[0])
            I.uses = sum((regs_of(o.split()[0] if ' ' in o and not o.startswith('-') else o) for o in ops[1:]), [])
            if op.startswith('v_fmac') or op.startswith('v_dot2c') or 'UNUSED_PRESERVE' in text or '_dpp' in op or op.startswith('v_writelane'):
                I.uses += I.defs
    else:
        I.kind = 'salu'
    return I
class Emit:
    def __init__(self):
        self.lines = []
        self.hist = []
        self.lgkm = []
        self.vm = []
        self.nnop = 0; self.nwait = 0; self.count = 0
    def raw(self, text):
        self.lines.append(text)
    def label(self, name):
        self.lines.append(name + ':')
    def _states(self, n):
        while n > 0:
            k = min(n, 16); self.lines.append(f's_nop {k-1}'); self.hist += [None] * k; n -= k; self.nnop += 1
    def wait(self, lgkm=None, vm=None):
        t = []
        if vm is not None:
            vm = min(vm, 63); t.append(f'vmcnt({vm})'); self.vm = self.vm[len(self.vm) - vm:] if vm < len(self.vm) else self.vm
            if vm == 0: self.vm = []
        if lgkm is not None:
            lgkm = min(lgkm, 15); t.append(f'lgkmcnt({lgkm})'); self.lgkm = self.lgkm[len(self.lgkm) - lgkm:] if lgkm < len(self.lgkm) else self.lgkm
            if lgkm == 0: self.lgkm = []
        self.lines.append('s_waitcnt ' + ' '.join(t)); self.hist.append(None); self.nwait += 1
    def __call__(self, text):
        for t in text.split('\n'):
            t = t.strip()
            if t: self.one(t)
    def one(self, text):
        I = classify(text)
        touched = set(I.uses) | set(I.defs) | set(I.srcc)
        need_l = None; need_v = None
        for idx, d in enumerate(self.lgkm):
            if d & touched: need_l = len(self.lgkm) - 1 - idx
        for idx, d in enumerate(self.vm):
            if d & touched: need_v = len(self.vm) - 1 - idx
        if I.kind == 'ds_r' and need_l is not None and not (set(I.uses) & set().union(*self.lgkm)):
            need_l = None
        if need_l is not None or need_v is not None: self.wait(need_l, need_v)
        need = 0
        H = self.hist
        for dist in range(1, min(len(H), 20) + 1):
            P = H[-dist]
            if P is None: continue
            gap = dist - 1
            req = 0
            pd = set(P.defs)
            if P.kind == 'mfma':
                big = P.passes == 8
                if I.kind == 'mfma':
                    if pd & set(I.uses): req = 12 if big else 8
                    elif pd & set(I.srcc):
                        if not (P.passes == I.passes and P.defs == I.srcc): req = 10 if big else 6
                    elif pd & set(I.defs): req = 10 if big else 6
                elif I.kind != 'salu':
                    if pd & touched: req = 12 if big else 8
                    if I.kind in ('valu','trans') and set(P.srcc) & set(I.defs): req = max(req, 7 if big else 3)
            elif P.kind in ('valu', 'trans'):
                if I.kind == 'mfma' and pd & (set(I.uses) | set(I.srcc)): req = 2
                if P.kind == 'trans' and I.kind in ('valu',) and pd & set(I.uses): req = max(req, 1)
                if (I.op.startswith('v_permlane') or '_dpp' in I.op) and pd & set(I.uses): req = max(req, 2)
                if (I.op.startswith('v_readlane') or I.op.startswith('v_readfirstlane')) and pd & set(I.uses): req = max(req, 1)
                if 'dst_sel:WORD' in P.text and I.kind in ('valu','trans') and pd & touched: req = max(req, 1)
            elif P.kind == 'vm_w' and ('x4' in P.op or 'x3' in P.op) and 'store' in P.op:
                if I.kind in ('valu','trans','mfma') and set(P.uses) & set(I.defs): req = 2
            if req - gap > need: need = req - gap
        if need > 0: self._states(need)
        self.lines.append(text); self.hist.append(I); self.count += 1
        if len(self.hist) > 64: self.hist = self.hist[-32:]
        if I.kind == 'ds_r': self.lgkm.append(set(I.defs))
        elif I.kind == 'ds_w': self.lgkm.append(set())
        elif I.kind == 'vm_r': self.vm.append(set(I.defs))
        elif I.kind == 'vm_w': self.vm.append(set())
    def text(self):
        return '\n'.join(self.lines)

class Sched:
    def __init__(self):
        self.ops = []
    def add(self, t, text):
        self.ops.append((t, len(self.ops), text))
    def check(self, order):
        pos = {idx: p for p, (_, idx, _) in enumerate(order)}
        lastw = {}; readers = {}
        bad = 0
        for (t, idx, text) in self.ops:
            I = classify(text)
            uses = set(I.uses) | set(I.srcc); defs = set(I.defs)
            for r in uses:
                if r in lastw and pos[lastw[r]] > pos[idx]:
                    bad += 1; print(f"RAW violated r{r}: '{self.ops[lastw[r]][2]}' t={self.ops[lastw[r]][0]:.3f} must precede '{text}' t={t:.3f}")
            for r in defs:
                if r in lastw and pos[lastw[r]] > pos[idx]:
                    bad += 1; print(f"WAW violated r{r}: '{self.ops[lastw[r]][2]}' t={self.ops[lastw[r]][0]:.3f} must precede '{text}' t={t:.3f}")
                for q in readers.get(r, ()):
                    if q != idx and pos[q] > pos[idx]:
                        bad += 1; print(f"WAR violated r{r}: '{self.ops[q][2]}' t={self.ops[q][0]:.3f} must precede '{text}' t={t:.3f}")
            for r in uses: readers.setdefault(r, []).append(idx)
            for r in defs: lastw[r] = idx; readers[r] = []
            if bad > 10: break
        assert bad == 0, "schedule violates dependencies"
    def emit(self, e):
        order = sorted(self.ops, key=lambda o: (o[0], o[1]))
        self.check(order)
        for (_, _, text) in order: e(text)
        self.ops = []
```

```python
XBYTES = 50331648
ROWB = 98304
WSBYTES = 268435456
WS_LN = 0
WS_W1B = 50331648
WS_W2R = WS_W1B + 73728
WS_LUT = WS_W2R + 73728
WS_B2 = WS_LUT + 16384
WS_SUM = WS_B2 + 512
NREP = 8
K_A = 0x409d30fc
K_NEGK = 0xbeeff558
K_NINVK = 0xc0088e99
K_INVK2 = 0x4091afa4
OOB = 0x80000000
SDWA1 = "dst_sel:DWORD dst_unused:UNUSED_PAD src0_sel:DWORD src1_sel:WORD_1"
def srd(e, s, ptr, size):
    e(f"s_mov_b32 s{s}, s{ptr}\ns_and_b32 s{s+1}, s{ptr+1}, 0xffff\ns_mov_b32 s{s+2}, {size}\ns_mov_b32 s{s+3}, 0x20000")
def R(a, n): return f"v[{a}:{a+n-1}]"
def kdesc(name, nv=256, ns=96):
    return f""".section .rodata,"a"
.p2align 6
.amdhsa_kernel {name}
  .amdhsa_next_free_vgpr {nv}
  .amdhsa_next_free_sgpr {ns}
  .amdhsa_accum_offset {nv}
  .amdhsa_group_segment_fixed_size 0
  .amdhsa_kernarg_size 72
  .amdhsa_user_sgpr_count 2
  .amdhsa_user_sgpr_kernarg_segment_ptr 1
  .amdhsa_system_sgpr_workgroup_id_x 1
  .amdhsa_float_denorm_mode_32 3
.end_amdhsa_kernel
.text
"""
def khead(name):
    return f""".globl {name}
.p2align 8
.type {name},@function
{name}:
"""
def gelu_y(e, y, x, t):
    e(f"v_fmaak_f32 v{t}, v{x}, v{x}, {K_A:#x}\nv_mul_f32 v{t}, v{x}, v{t}\nv_exp_f32 v{t}, v{t}\nv_add_f32 v{t}, 1.0, v{t}\nv_rcp_f32 v{t}, v{t}\nv_mul_f32 v{y}, v{x}, v{t}")
def wave_reduce_dpp(e, op, v, ident_ok=True):
    for c in ("row_shr:1", "row_shr:2", "row_shr:4", "row_shr:8"):
        e(f"{op}_dpp v{v}, v{v}, v{v} {c} row_mask:0xf bank_mask:0xf")
    e(f"{op}_dpp v{v}, v{v}, v{v} row_bcast:15 row_mask:0xa bank_mask:0xf")
    e(f"{op}_dpp v{v}, v{v}, v{v} row_bcast:31 row_mask:0xc bank_mask:0xf")
```

```python
from asm import *
from common import *
RING = 90112; PAIRB = 13312; ROWL = 6656
SCR = RING + 5 * PAIRB
SCR_DW = SCR
SCR_MAX = SCR + 2048
SCR_DUMMY = SCR + 3072
def fragA(F): return 8192 + 1024 * F if F < 56 else 73728 + 1024 * (F - 56)
vLANE = 1; vB0 = 2; vB1 = 3; vOFA = 4; vOFB = 5; vONE = 6; vIDX = 7
vCB = 8
vAD = 11
vHALF = 14
vSJ = 16
A1 = 28; A2 = 76; SUM = 124; LN = 136
LB = (160, 176); VB = (192, 208); T = 224; W = 240
ACC = 160
CBUF = 208
sX = 4; sWS = 8; sW1 = 12; sDW = 16; sW2 = 20; sGB = 24; sDBG = 28
sWAVE = 32; sX0 = 33; sY0 = 34; sS = 35; sNS = 36; sDMA = 37; sLNO = 38; sMB = 39; sMA = 40; sREP = 41; sT0 = 44
LMASK_B = [0b11011011] * 12

def dma(e, voff, soff, m0):
    e(f"s_mov_b32 m0, {m0}" if isinstance(m0, int) else f"s_mov_b32 m0, {m0}")
    e("s_nop 0")
    e(f"buffer_load_dwordx4 v{voff}, s[{sX}:{sX+3}], {soff} offen lds")

def dma_pair(e, t, offA=vOFA, offB=vOFB, first=False):
    slot = (t % 5) * PAIRB + RING
    if first: so = "0"
    else:
        e(f"s_add_u32 s{sT0}, s{sDMA}, {2*t*ROWB}"); so = f"s{sT0}"
    e(f"s_add_u32 s{sT0+1}, s{sMA}, {slot}")
    dma(e, offA, so, f"s{sT0+1}")
    e(f"s_add_u32 s{sT0+1}, s{sMB}, {slot}\ns_cmp_lt_u32 s{sWAVE}, 5\ns_cselect_b32 s{sT0+1}, s{sT0+1}, {SCR_DUMMY}")
    dma(e, offB, so, f"s{sT0+1}")

def prologue(e):
    e("s_cmp_ge_u32 s2, 256"); e.raw("s_cbranch_scc1 LA_end")
    e("s_load_dwordx16 s[48:63], s[0:1], 0\ns_load_dwordx2 s[64:65], s[0:1], 64")
    e(f"v_and_b32 v{vLANE}, 63, v0\nv_lshrrev_b32 v15, 6, v0\nv_lshlrev_b32 v{vB0}, 4, v{vLANE}")
    e(f"v_readfirstlane_b32 s{sWAVE}, v15")
    e(f"v_add_u32 v{vB1}, 0x10000, v{vB0}\nv_mov_b32 v{vONE}, 1\nv_lshrrev_b32 v{vHALF}, 5, v{vLANE}")
    e(f"s_and_b32 s{sX0}, s2, 15\ns_lshl_b32 s{sX0}, s{sX0}, 5\ns_lshr_b32 s{sY0}, s2, 4\ns_lshl_b32 s{sY0}, s{sY0}, 5")
    e(f"s_and_b32 s{sREP}, s2, {NREP-1}")
    e.raw("s_waitcnt lgkmcnt(0)")
    srd(e, sX, 48, XBYTES); srd(e, sDW, 50, 1728); srd(e, sW1, 52, 73728); srd(e, sW2, 54, 73728)
    srd(e, sGB, 58, 768); srd(e, sDBG, 62, 256); srd(e, sWS, 64, WSBYTES)
    for i in range(2):
        e(f"s_mov_b32 m0, {SCR_DW}\ns_nop 0")
        e(f"buffer_load_dwordx4 v{vB0}, s[{sDW}:{sDW+3}], 0 offen offset:{1024*i} lds")
    WR = 160
    e(f"v_and_b32 v16, 31, v{vLANE}\nv_mul_u32_u24 v16, 12, v16\nv_mul_u32_u24 v17, {4*768}, v{vHALF}\nv_add_u32 v16, v16, v17")
    for i in range(3):
        e(f"s_mul_i32 s{sT0}, s{sWAVE}, 3\ns_add_u32 s{sT0}, s{sT0}, {i}")
        e(f"s_lshr_b32 s{sT0+1}, s{sT0}, 2\ns_mul_i32 s{sT0+1}, s{sT0+1}, {16*768}")
        e(f"s_and_b32 s{sT0+2}, s{sT0}, 1\ns_mul_i32 s{sT0+2}, s{sT0+2}, {8*768}\ns_add_u32 s{sT0+1}, s{sT0+1}, s{sT0+2}")
        e(f"s_bfe_u32 s{sT0+2}, s{sT0}, 0x10001\ns_mul_i32 s{sT0+2}, s{sT0+2}, 384\ns_add_u32 s{sT0+1}, s{sT0+1}, s{sT0+2}")
        for jj in range(4):
            e(f"buffer_load_dwordx3 {R(WR+16*i+4*jj, 3)}, v16, s[{sW1}:{sW1+3}], s{sT0+1} offen offset:{768*jj}")
    e(f"s_lshl_b32 s{sMA}, s{sWAVE}, 10\ns_add_u32 s{sMB}, s{sMA}, 8192")
    e(f"s_lshl_b32 s{sT0}, s{sY0}, 9\ns_add_u32 s{sT0}, s{sT0}, s{sX0}\ns_sub_u32 s{sT0}, s{sT0}, 513\ns_mul_i32 s{sDMA}, s{sT0}, 192")
    for (off, add, o0) in ((vOFA, 0, 24), (vOFB, 512, 25)):
        e(f"s_lshl_b32 s{sT0}, s{sWAVE}, 6\ns_add_u32 s{sT0}, s{sT0}, {add}")
        e(f"v_add_u32 v17, s{sT0}, v{vLANE}")
        e(f"v_cmp_le_u32 vcc, 416, v17\ns_nop 1\nv_cndmask_b32 v18, 0, 1, vcc")
        e(f"v_mul_u32_u24 v19, 416, v18\nv_sub_u32 v19, v17, v19")
        e(f"v_mul_u32_u24 v20, 5462, v19\nv_lshrrev_b32 v20, 16, v20")
        e(f"v_mul_u32_u24 v21, 12, v20\nv_sub_u32 v21, v19, v21")
        e(f"v_bfe_u32 v22, v20, 2, 2\nv_xor_b32 v21, v21, v22")
        e(f"v_lshl_add_u32 v22, v18, 9, v20\nv_mul_u32_u24 v22, 192, v22\nv_lshl_add_u32 v22, v21, 4, v22")
        e(f"v_add_u32 v23, s{sX0}, v20\nv_subrev_u32 v23, 1, v23")
        e(f"v_mov_b32 v21, {OOB:#x}")
        e(f"v_cmp_gt_u32 vcc, 512, v23\ns_nop 1\nv_cndmask_b32 v22, v21, v22, vcc")
        e(f"v_cmp_gt_u32 vcc, 34, v20\ns_nop 1\nv_cndmask_b32 v22, v21, v22, vcc")
        e(f"v_cmp_gt_u32 vcc, 832, v17\ns_nop 1\nv_cndmask_b32 v{off}, v21, v22, vcc")
        e(f"v_add_u32 v22, s{sDMA}, v{off}\nv_cmp_gt_u32 vcc, v21, v{off}\ns_nop 1\nv_cndmask_b32 v22, v21, v22, vcc")
        e(f"v_add_u32 v23, s{sY0}, v18\nv_cmp_lt_u32 vcc, 0, v23\ns_nop 1\nv_cndmask_b32 v{o0}, v21, v22, vcc")
    dma_pair(e, 0, 24, 25, first=True)
    for t in range(1, 5): dma_pair(e, t)
    e(f"v_and_b32 v17, 15, v{vLANE}\nv_bfe_u32 v18, v{vLANE}, 4, 1")
    e(f"s_and_b32 s{sT0}, s{sWAVE}, 1\ns_lshl_b32 s{sT0}, s{sT0}, 4")
    for dx in range(3):
        e(f"v_add_u32 v19, s{sT0}, v17\nv_add_u32 v19, {dx}, v19")
        e(f"v_bfe_u32 v20, v19, 2, 2\nv_lshlrev_b32 v20, 4, v20\nv_mul_u32_u24 v19, 192, v19\nv_add_u32 v19, v19, v20")
        e(f"v_mul_u32_u24 v20, {ROWL}, v18\nv_add_u32 v{vCB+dx}, v19, v20")
    for j in range(12): e(f"v_mov_b32 v{SUM+j}, 0")
    e(f"v_mov_b32 v17, 0\ns_mov_b32 s{sT0}, 0x7fff7fff")
    for i in range(3):
        for jj in range(4):
            for d in range(3):
                r = WR + 16*i + 4*jj + d
                e(f"v_and_b32 v18, s{sT0}, v{r}\nv_pk_max_u16 v17, v17, v18")
    e("v_lshrrev_b32 v18, 16, v17\nv_and_b32 v17, 0xffff, v17\nv_max_u32 v17, v17, v18")
    wave_reduce_dpp(e, "v_max_u32", 17)
    e(f"v_readlane_b32 s{sT0}, v17, 63\ns_lshl_b32 s{sT0+1}, s{sWAVE}, 2\ns_add_u32 s{sT0+1}, s{sT0+1}, {SCR_MAX}")
    e(f"s_nop 2\nv_mov_b32 v17, s{sT0}\nv_mov_b32 v18, s{sT0+1}\nds_write_b32 v18, v17")
    e.wait(lgkm=0); e("s_barrier")
    e(f"v_mov_b32 v18, {SCR_MAX}\nds_read_b128 v[20:23], v18\nds_read_b128 v[24:27], v18 offset:16")
    e(f"v_bfe_u32 v208, v{vLANE}, 2, 1\nv_bfe_u32 v209, v{vLANE}, 3, 1\nv_and_b32 v210, 3, v{vLANE}\nv_lshl_add_u32 v211, v209, 2, v210")
    e(f"v_lshrrev_b32 v212, 4, v{vLANE}")
    def waddr(dst, dyreg, dxexpr):
        e(f"v_mul_u32_u24 v213, 3, v{dyreg}\nv_add_u32 v213, {dxexpr}, v213\nv_mul_u32_u24 v213, 96, v213\nv_add_u32 v213, v213, v211")
        e(f"v_lshlrev_b32 v213, 1, v213\nv_add_u32 v213, {SCR_DW}, v213\nv_mov_b32 v214, {SCR_DW+1792}")
        e(f"v_cmp_gt_u32 vcc, 3, v{dyreg}\ns_nop 1\nv_cndmask_b32 v{dst}, v214, v213, vcc")
    e(f"v_and_b32 v215, 1, v212\nv_lshlrev_b32 v215, 1, v215\nv_sub_u32 v215, v215, v208")
    waddr(216, 215, f"v{vHALF}")
    e("v_add_u32 v215, 1, v215"); waddr(217, 215, f"v{vHALF}")
    e("v_sub_u32 v215, v212, v208"); waddr(218, 215, "2")
    e(f"v_xor_b32 v213, 1, v210\nv_lshl_or_b32 v213, v213, 2, v210\nv_mul_u32_u24 v{vIDX}, 0x1111, v213")
    e(f"v_subrev_u32 v219, 1, v209\nv_not_b32 v220, v219")
    e(f"v_and_b32 v221, 1, v211\nv_lshlrev_b32 v221, 4, v221\nv_lshrrev_b32 v213, 1, v211")
    for r in range(4):
        e(f"v_cmp_eq_u32 vcc, {r}, v213\ns_nop 1\nv_cndmask_b32 v{222+r}, 0, -1, vcc")
    e("v_max_u32 v20, v20, v21\nv_max3_u32 v20, v20, v22, v23\nv_max3_u32 v20, v20, v24, v25\nv_max3_u32 v20, v20, v26, v27")
    e(f"v_readfirstlane_b32 s{sS}, v20\ns_nop 3\ns_lshr_b32 s{sS}, s{sS}, 7\ns_max_u32 s{sS}, s{sS}, 25\ns_sub_u32 s{sS}, s{sS}, 25\ns_sub_u32 s{sNS}, 0, s{sS}")
    for cb in range(12):
        e(f"ds_read_u16 v{A1+4*cb}, v216 offset:{16*cb}\nds_read_u16 v{A1+4*cb+2}, v217 offset:{16*cb}\nds_read_u16 v{A2+4*cb}, v218 offset:{16*cb}")
    e(f"s_mov_b32 s{sT0+6}, 0x07060302")
    for i in range(3):
        e(f"s_mul_i32 s{sT0}, s{sWAVE}, 3\ns_add_u32 s{sT0}, s{sT0}, {i}")
        e(f"s_lshr_b32 s{sT0+1}, s{sT0}, 2\ns_bfe_u32 s{sT0+2}, s{sT0}, 0x10001\ns_mul_i32 s{sT0+2}, s{sT0+2}, 36\ns_add_u32 s{sT0+1}, s{sT0+1}, s{sT0+2}")
        e(f"s_and_b32 s{sT0+2}, s{sT0}, 1\ns_lshl_b32 s{sT0+2}, s{sT0+2}, 3")
        for el in range(6):
            e(f"s_add_u32 s{sT0+3}, s{sT0+1}, {6*el}\ns_cmp_ge_u32 s{sT0+3}, 56\ns_cselect_b32 s{sT0+4}, 16, 8")
            e(f"s_add_u32 s{sT0+3}, s{sT0+3}, s{sT0+4}\ns_lshl_b32 s{sT0+3}, s{sT0+3}, 10\ns_add_u32 s{sT0+3}, s{sT0+3}, s{sT0+2}")
            tp = 226 + 4*(el % 2)
            for a in range(2):
                r0 = WR + 16*i + 4*(2*a) + el//2; r1 = r0 + 4
                if el % 2:
                    e(f"v_perm_b32 v{tp+a}, v{r1}, v{r0}, s{sT0+6}")
                else:
                    e(f"v_lshlrev_b32 v{tp+2}, 16, v{r0}\nv_lshlrev_b32 v{tp+3}, 16, v{r1}\nv_ldexp_f32 v{tp+2}, v{tp+2}, s{sNS}\nv_ldexp_f32 v{tp+3}, v{tp+3}, s{sNS}")
                    e(f"v_cvt_pk_bf16_f32 v{tp+a}, v{tp+2}, v{tp+3}")
            e(f"v_add_u32 v{234+el%2}, s{sT0+3}, v{vB0}\nds_write_b64 v{234+el%2}, {R(tp,2)}")
    for cb in range(12):
        a = A1 + 4*cb; b = A2 + 4*cb
        e(f"v_and_b32 v{a+1}, v220, v{a}\nv_and_b32 v{a}, v219, v{a}\nv_and_b32 v{a+3}, v220, v{a+2}\nv_and_b32 v{a+2}, v219, v{a+2}")
        e(f"v_lshlrev_b32 v{b}, v221, v{b}\nv_and_b32 v{b+1}, v223, v{b}\nv_and_b32 v{b+2}, v224, v{b}\nv_and_b32 v{b+3}, v225, v{b}\nv_and_b32 v{b}, v222, v{b}")
    e("v_lshrrev_b32 v208, 8, v0\nv_and_b32 v209, 255, v0\nv_lshlrev_b32 v210, 31, v208\nv_lshl_or_b32 v210, v209, 20, v210\nv_or_b32 v210, 0x8000, v210")
    e("v_lshlrev_b32 v208, 16, v208\nv_lshl_or_b32 v208, v209, 5, v208")
    for q in range(0, 16, 4):
        for z in range(4):
            e(f"v_add_u32 v{212+z}, {(q+z)<<16:#x}, v210\nv_ldexp_f32 v{212+z}, v{212+z}, s{sS}")
        for z in range(4): e(f"v_fmaak_f32 v{216+z}, v{212+z}, v{212+z}, {K_A:#x}")
        for z in range(4): e(f"v_mul_f32 v{216+z}, v{212+z}, v{216+z}")
        for z in range(4): e(f"v_exp_f32 v{216+z}, v{216+z}")
        for z in range(4): e(f"v_add_f32 v{216+z}, 1.0, v{216+z}")
        for z in range(4): e(f"v_rcp_f32 v{216+z}, v{216+z}")
        for z in range(4): e(f"v_mul_f32 v{216+z}, v{212+z}, v{216+z}")
        for z in range(4): e(f"v_mul_f32 v{216+z}, v{216+z}, v{216+z}")
        e(f"v_cvt_pk_bf16_f32 v{220+q//2}, v216, v217\nv_cvt_pk_bf16_f32 v{221+q//2}, v218, v219")
    e(f"ds_write_b128 v208, v[220:223]\nds_write_b128 v208, v[224:227] offset:16")
    e(f"s_lshl_b32 s{sLNO}, s2, 5\ns_add_u32 s{sLNO}, s{sLNO}, s{sWAVE}\ns_mul_i32 s{sLNO}, s{sLNO}, 6144")

def side1(e):
    n = vSJ
    e.raw(f"s_cmp_eq_u32 s{sWAVE}, 1\ns_cbranch_scc1 LA_s1w1\ns_cmp_eq_u32 s{sWAVE}, 2\ns_cbranch_scc1 LA_s1w2\ns_cmp_eq_u32 s{sWAVE}, 3\ns_cbranch_scc1 LA_s1b2\ns_cmp_eq_u32 s{sWAVE}, 7\ns_cbranch_scc1 LA_s1tk\ns_branch LA_s1end")
    def jbrem():
        e(f"s_mul_i32 s{sT0}, s2, 43\ns_lshr_b32 s{sT0}, s{sT0}, 8\ns_mul_i32 s{sT0+1}, s{sT0}, 6\ns_sub_u32 s{sT0+1}, s2, s{sT0+1}")
    e.label("LA_s1w1")
    e.raw("s_cmp_ge_u32 s2, 72\ns_cbranch_scc1 LA_s1end")
    jbrem()
    e(f"s_mul_i32 s{sT0+1}, s{sT0+1}, {16*768}\ns_lshl_b32 s{sT0}, s{sT0}, 6\ns_add_u32 s{sT0}, s{sT0}, s{sT0+1}")
    e(f"v_and_b32 v15, 31, v{vLANE}\nv_lshlrev_b32 v15, 1, v15\nv_mul_u32_u24 v{n+8}, {4*768}, v{vHALF}\nv_add_u32 v15, v15, v{n+8}")
    e(f"s_add_u32 s{sT0+1}, s{sT0}, {8*768}")
    for j in range(8): e(f"buffer_load_ushort v{n+j}, v15, s[{sW1}:{sW1+3}], s{sT0+(j>>2)} offen offset:{768*(j&3)}")
    e.raw("s_branch LA_s1end")
    e.label("LA_s1w2")
    e.raw("s_cmp_ge_u32 s2, 72\ns_cbranch_scc1 LA_s1end")
    jbrem()
    e(f"s_cmp_ge_u32 s{sT0+1}, 3\ns_cselect_b32 s{sT0+2}, 1, 0\ns_mul_i32 s{sT0+3}, s{sT0+2}, 3\ns_sub_u32 s{sT0+3}, s{sT0+1}, s{sT0+3}")
    e(f"s_lshl_b32 s{sT0}, s{sT0}, 1\ns_add_u32 s{sT0}, s{sT0}, s{sT0+2}\ns_mul_i32 s{sT0}, s{sT0}, {16*192}")
    e(f"s_cmp_eq_u32 s{sT0+3}, 2\ns_cselect_b32 s{sT0+4}, 1, 2\ns_cselect_b32 s{sT0+5}, 64, s{sT0+3}\ns_lshl_b32 s{sT0+5}, s{sT0+5}, 1\ns_add_u32 s{sT0}, s{sT0}, s{sT0+5}")
    e(f"v_and_b32 v15, 31, v{vLANE}\nv_lshlrev_b32 v15, s{sT0+4}, v15\nv_mul_u32_u24 v{n+8}, {4*192}, v{vHALF}\nv_add_u32 v15, v15, v{n+8}")
    for j in range(8): e(f"buffer_load_ushort v{n+j}, v15, s[{sW2}:{sW2+3}], s{sT0} offen offset:{192*(8*(j>>2)+(j&3))}")
    e.raw("s_branch LA_s1end")
    e.label("LA_s1b2")
    e.raw("s_cmp_ge_u32 s2, 96\ns_cbranch_scc1 LA_s1end")
    e(f"v_mul_u32_u24 v15, 192, v{vLANE}\ns_lshl_b32 s{sT0}, s2, 1")
    for i in range(6):
        e(f"buffer_load_ushort v{n+i}, v15, s[{sW2}:{sW2+3}], s{sT0} offen\ns_add_u32 s{sT0}, s{sT0}, {64*192}")
    e(f"v_lshlrev_b32 v15, 1, v{vLANE}")
    for i in range(6): e(f"buffer_load_ushort v{n+6+i}, v15, s[{sGB}:{sGB+3}], 0 offen offset:{128*i}")
    e.raw("s_branch LA_s1end")
    e.label("LA_s1tk")
    e(f"s_lshl_b32 s{sT0}, s{sREP}, 2\nv_mov_b32 v{n}, 1\nv_mov_b32 v15, 0\ns_mov_b64 exec, 1")
    e(f"buffer_atomic_add v{n}, v15, s[{sDBG}:{sDBG+3}], s{sT0} offen sc0")
    e("s_mov_b64 exec, -1")
    e.label("LA_s1end")
    e.vm = [set()] * 0

def side2(e):
    n = vSJ
    e.raw(f"s_cmp_eq_u32 s{sWAVE}, 1\ns_cbranch_scc1 LA_s2w1\ns_cmp_eq_u32 s{sWAVE}, 2\ns_cbranch_scc1 LA_s2w2\ns_cmp_eq_u32 s{sWAVE}, 3\ns_cbranch_scc1 LA_s2b2\ns_cmp_eq_u32 s{sWAVE}, 4\ns_cbranch_scc1 LA_s2lut\ns_cmp_eq_u32 s{sWAVE}, 7\ns_cbranch_scc1 LA_s2tk\ns_branch LA_s2end")
    e.label("LA_s2w1")
    e.raw("s_cmp_ge_u32 s2, 72\ns_cbranch_scc1 LA_s2end")
    e(f"s_mul_i32 s{sT0}, s2, 43\ns_lshr_b32 s{sT0}, s{sT0}, 8")
    e(f"s_mov_b32 s{sT0+1}, {LMASK_B[0]}")
    for jb in range(1, 12):
        if LMASK_B[jb] != LMASK_B[0]:
            e(f"s_cmp_eq_u32 s{sT0}, {jb}\ns_cselect_b32 s{sT0+1}, {LMASK_B[jb]}, s{sT0+1}")
    e(f"v_bfe_u32 v15, v{vLANE}, 3, 2\nv_bfe_u32 v{n+8}, v{vLANE}, 1, 1\nv_lshl_add_u32 v15, v15, 1, v{n+8}")
    e(f"v_lshrrev_b32 v15, v15, s{sT0+1}\nv_and_b32 v15, 1, v15\nv_mul_lo_u32 v15, v15, s{sNS}")
    for j in range(8): e(f"v_lshlrev_b32 v{n+j}, 16, v{n+j}\nv_ldexp_f32 v{n+j}, v{n+j}, v15")
    for j in range(4): e(f"v_cvt_pk_bf16_f32 v{n+j}, v{n+2*j}, v{n+2*j+1}")
    e(f"s_lshl_b32 s{sT0}, s2, 10\ns_add_u32 s{sT0}, s{sT0}, {WS_W1B}")
    e(f"buffer_store_dwordx4 {R(n,4)}, v{vB0}, s[{sWS}:{sWS+3}], s{sT0} offen")
    e.raw("s_branch LA_s2end")
    e.label("LA_s2w2")
    e.raw("s_cmp_ge_u32 s2, 72\ns_cbranch_scc1 LA_s2end")
    for j in range(4): e(f"v_lshl_or_b32 v{n+j}, v{n+2*j+1}, 16, v{n+2*j}")
    e(f"s_lshl_b32 s{sT0}, s2, 10\ns_add_u32 s{sT0}, s{sT0}, {WS_W2R}")
    e(f"buffer_store_dwordx4 {R(n,4)}, v{vB0}, s[{sWS}:{sWS+3}], s{sT0} offen")
    e.raw("s_branch LA_s2end")
    e.label("LA_s2b2")
    e.raw("s_cmp_ge_u32 s2, 96\ns_cbranch_scc1 LA_s2end")
    for i in range(12): e(f"v_lshlrev_b32 v{n+i}, 16, v{n+i}")
    e(f"v_mul_f32 v15, v{n}, v{n+6}")
    for i in range(1, 6): e(f"v_fmac_f32 v15, v{n+i}, v{n+6+i}")
    wave_reduce_dpp(e, "v_add_f32", 15)
    e(f"s_lshl_b32 s{sT0}, s2, 2\ns_add_u32 s{sT0}, s{sT0}, {WS_B2}\nv_mov_b32 v{n}, 0\ns_mov_b64 exec, 0x8000000000000000" .replace("s_mov_b64 exec, 0x8000000000000000", "s_mov_b32 exec_lo, 0\ns_mov_b32 exec_hi, 0x80000000"))
    e(f"buffer_store_dword v15, v{n}, s[{sWS}:{sWS+3}], s{sT0} offen")
    e("s_mov_b64 exec, -1")
    e.raw("s_branch LA_s2end")
    e.label("LA_s2lut")
    e.raw("s_cmp_ge_u32 s2, 128\ns_cbranch_scc1 LA_s2end")
    e(f"s_lshl_b32 s{sT0}, s2, 6\nv_add_u32 v15, s{sT0}, v{vLANE}")
    e(f"v_lshrrev_b32 v{n}, 12, v15\nv_lshlrev_b32 v{n}, 31, v{n}\nv_and_b32 v{n+1}, 4095, v15\nv_lshl_or_b32 v{n}, v{n+1}, 16, v{n}\nv_or_b32 v{n}, 0x8000, v{n}\nv_ldexp_f32 v{n}, v{n}, s{sS}")
    gelu_y(e, n, n, n+1)
    e(f"v_cvt_pk_bf16_f32 v{n}, v{n}, v{n}\nv_lshlrev_b32 v15, 1, v15\ns_mov_b32 s{sT0}, {WS_LUT}")
    e(f"buffer_store_short v{n}, v15, s[{sWS}:{sWS+3}], s{sT0} offen")
    e.raw("s_branch LA_s2end")
    e.label("LA_s2tk")
    e(f"v_readfirstlane_b32 s42, v{n}\ns_nop 3\ns_cmp_lg_u32 s42, 0")
    e.raw("s_cbranch_scc1 LA_s2end")
    e(f"v_mov_b32 v{n}, 0\nv_mov_b32 v{n+1}, 0\nv_mov_b32 v{n+2}, 0\nv_mul_u32_u24 v15, 12, v{vLANE}")
    e(f"s_mul_i32 s{sT0}, s{sREP}, 1536\ns_add_u32 s{sT0}, s{sT0}, {WS_SUM}")
    e(f"buffer_store_dwordx3 {R(n,3)}, v15, s[{sWS}:{sWS+3}], s{sT0} offen sc0 sc1\nbuffer_store_dwordx3 {R(n,3)}, v15, s[{sWS}:{sWS+3}], s{sT0} offen offset:768 sc0 sc1")
    e.label("LA_s2end")
    e("s_nop 1")

def side3(e):
    e.raw(f"s_cmp_lg_u32 s{sWAVE}, 7\ns_cbranch_scc1 LA_s3end\ns_cmp_lg_u32 s42, 0\ns_cbranch_scc1 LA_s3end")
    e(f"s_lshl_b32 s{sT0}, s{sREP}, 2\nv_mov_b32 v{vSJ}, 1\nv_mov_b32 v15, 0\ns_mov_b64 exec, 1")
    e(f"buffer_atomic_add v{vSJ}, v15, s[{sDBG}:{sDBG+3}], s{sT0} offen offset:64")
    e("s_mov_b64 exec, -1")
    e.label("LA_s3end")

def conv(e, s):
    e(f"s_lshr_b32 s{sT0}, s{sWAVE}, 1\ns_add_u32 s{sT0}, s{sT0}, {(4*s) % 5}")
    e(f"s_add_u32 s{sT0+1}, s{sT0}, 1")
    for k in range(2):
        e(f"s_cmp_ge_u32 s{sT0+k}, 5\ns_cselect_b32 s{sT0+2}, 5, 0\ns_sub_u32 s{sT0+k}, s{sT0+k}, s{sT0+2}\ns_mul_i32 s{sT0+k}, s{sT0+k}, {PAIRB}")
    e(f"s_sub_u32 s{sT0+1}, s{sT0+1}, s{sT0}\ns_add_u32 s{sT0}, s{sT0}, {RING}")
    e(f"v_mul_lo_u32 v15, v{vHALF}, s{sT0+1}\nv_add_u32 v15, s{sT0}, v15")
    for dx in range(3): e(f"v_add_u32 v{vAD+dx}, v15, v{vCB+dx}")
    sc = Sched()
    order = [(b, a) for b in range(4) for a in range(3)]
    S1, S2 = 244, 245
    for k, (b, a) in enumerate(order):
        cb = 4*a + b; buf = CBUF + 12*(k % 3); acc = ACC + 4*cb
        if a == 0 and b > 0:
            for dx in range(3): sc.add(k - 2.05, f"v_xor_b32 v{vAD+dx}, {16*(b ^ (b-1))}, v{vAD+dx}")
        sc.add(k - 2, f"ds_read_b128 {R(buf+8,4)}, v{vAD+2} offset:{64*a}")
        sc.add(k - 2, f"ds_read_b128 {R(buf,4)}, v{vAD} offset:{64*a}")
        sc.add(k - 2, f"ds_read_b128 {R(buf+4,4)}, v{vAD+1} offset:{64*a}")
        sc.add(k - 0.2, f"v_mfma_f32_16x16x32_bf16 {R(acc,4)}, {R(A2+4*cb,4)}, {R(buf+8,4)}, 0")
        sc.add(k - 0.1, f"v_smfmac_f32_16x16x64_bf16 {R(acc,4)}, {R(A1+4*cb,4)}, {R(buf,8)}, v{vIDX}")
        for i in range(4):
            tt = k + 1.5 + 0.01*i
            if k == 0 and i == 0:
                sc.add(tt, f"v_mov_b32 v{S1}, v{acc}"); sc.add(tt, f"v_mul_f32 v{S2}, v{acc}, v{acc}")
            else:
                sc.add(tt, f"v_add_f32 v{S1}, v{acc+i}, v{S1}"); sc.add(tt, f"v_fmac_f32 v{S2}, v{acc+i}, v{acc+i}")
    sc.emit(e)

def layernorm(e):
    S1, S2 = 244, 245
    e(f"v_permlane32_swap_b32 v{S1}, v{S2}\nv_add_f32 v{S1}, v{S1}, v{S2}\nv_mov_b32 v{S2}, v{S1}\nv_permlane32_swap_b32 v{S1}, v{S2}")
    e(f"v_mul_f32 v{S1}, {0x3c2aaaab:#x}, v{S1}\nv_mul_f32 v{S2}, {0x3c2aaaab:#x}, v{S2}\nv_fma_f32 v{S2}, -v{S1}, v{S1}, v{S2}\nv_max_f32 v{S2}, 0, v{S2}")
    e(f"v_add_f32 v{S2}, {0x3727c5ac:#x}, v{S2}\nv_rsq_f32 v{S2}, v{S2}\nv_mul_f32 v{S2}, {K_NEGK:#x}, v{S2}\nv_mul_f32 v{S1}, v{S1}, v{S2}")
    for t in range(6):
        for j in range(8): e(f"v_fma_f32 v{ACC+8*t+j}, v{ACC+8*t+j}, v{S2}, -v{S1}")
        for j in range(4): e(f"v_cvt_pk_bf16_f32 v{LN+4*t+j}, v{ACC+8*t+2*j}, v{ACC+8*t+2*j+1}")

def gemm(e, prio=True, nw=3):
    seq = [(1, t) for t in range(6)]
    for i in range(6):
        seq += [(2*i, t) for t in range(6)]
        if i < 5: seq += [(2*i+3, t) for t in range(6)]
    st = {'m': 0, 'r': 0}
    def prefetch():
        r = st['r']
        if r >= len(seq): return
        b, t = seq[r]; a = fragA(6*b + t); sl = W + 4*(r % nw)
        e(f"ds_read_b128 {R(sl,4)}, v{vB0 if a < 65536 else vB1} offset:{a % 65536}")
        st['r'] += 1
    def mfma(dst):
        m = st['m']; b, t = seq[m]; sl = W + 4*(m % nw)
        e(f"v_mfma_f32_32x32x16_bf16 {R(dst,16)}, {R(LN+4*t,4)}, {R(sl,4)}, {'0' if t == 0 else R(dst,16)}")
        st['m'] += 1
    sdwa = lambda r: e(f"v_lshlrev_b32_sdwa v{r}, v{vONE}, v{r} {SDWA1}")
    gather = lambda r: e(f"ds_read_u16_d16_hi v{r}, v{r}")
    def Nsec(trans, dst, gregs):
        if prio: e("s_setprio 1")
        tr = list(range(16)) if trans else []; g = list(gregs)
        ng = [2,2,2,2,0,0]; nt = [3,3,2,3,3,2]
        for s in range(6):
            gg = [g.pop(0) for _ in range(ng[s])] if g else []
            for r in gg: sdwa(r)
            if dst is not None: mfma(dst)
            for r in gg: gather(r)
            if dst is not None: prefetch()
            if tr:
                for _ in range(nt[s]):
                    j = tr.pop(0); e(f"{trans} v{T+j}, v{T+j}")
        if prio: e("s_setprio 0")
    def pw(V):
        for j in range(16): e(f"v_fmaak_f32 v{T+j}, v{V+j}, v{V+j}, {K_A:#x}")
        for j in range(16): e(f"v_mul_f32 v{T+j}, v{V+j}, v{T+j}")
    for k in range(nw-1): prefetch()
    Nsec(None, VB[1], [])
    pw(VB[1])
    for i in range(6):
        Lc, Lp = LB[i % 2], LB[(i+1) % 2]; Vc, Vn = VB[(i+1) % 2], VB[i % 2]
        aL, aLp, aV = SUM + 2*i, SUM + 2*i - 2, SUM + 2*i + 1
        Nsec("v_exp_f32", Lc, range(Lp+8, Lp+16) if i else [])
        for j in range(16):
            e(f"v_add_f32 v{T+j}, 1.0, v{T+j}")
            if i and j % 2 == 1: e(f"v_add_f32 v{aLp}, v{Lp + j//2}, v{aLp}")
        Nsec("v_rcp_f32", Vn if i < 5 else None, range(Lc, Lc+8))
        if i == 5:
            for r in range(Lc+8, Lc+16): sdwa(r)
            for r in range(Lc+8, Lc+16): gather(r)
        for j in range(16):
            e(f"v_mul_f32 v{T+j}, v{Vc+j}, v{T+j}")
            if j > 0: e(f"v_fmac_f32 v{aV}, v{T+j-1}, v{T+j-1}")
            if i and j % 2 == 1: e(f"v_add_f32 v{aLp}, v{Lp + 8 + j//2}, v{aLp}")
        e(f"v_fmac_f32 v{aV}, v{T+15}, v{T+15}")
        if i < 5: pw(Vn)
        else:
            for j in range(16): e(f"v_add_f32 v{aL}, v{Lc+j}, v{aL}")

def finish(e):
    for P in range(6):
        e(f"v_permlane32_swap_b32 v{SUM+2*P}, v{SUM+2*P+1}")
    for P in range(6): e(f"v_add_f32 v{SUM+2*P}, v{SUM+2*P}, v{SUM+2*P+1}")
    e(f"v_and_b32 v15, 31, v{vLANE}\nv_mul_u32_u24 v15, 6, v15\nv_add_u32 v15, v15, v{vHALF}\nv_lshlrev_b32 v15, 2, v15")
    e(f"s_mul_i32 s{sT0}, s{sWAVE}, 1536\ns_add_u32 s{sT0}, s{sT0}, {RING}\nv_add_u32 v15, s{sT0}, v15")
    for P in range(6): e(f"ds_write_b32 v15, v{SUM+2*P} offset:{768*(P//3) + 8*(P%3)}")
    e.wait(lgkm=0); e("s_barrier")
    e.raw(f"s_cmp_ge_u32 s{sWAVE}, 6\ns_cbranch_scc1 LA_end")
    e(f"v_lshlrev_b32 v15, 2, v0\nv_add_u32 v16, {RING}, v15")
    for w in range(8): e(f"ds_read_b32 v{20+w}, v16 offset:{1536*w}")
    e(f"s_lshl_b32 s{sT0}, s{sREP}, 2\nv_mov_b32 v16, 0\ns_mov_b32 s{sT0+1}, 0x100000")
    e.label("LA_poll")
    e(f"buffer_load_dword v17, v16, s[{sDBG}:{sDBG+3}], s{sT0} offen offset:64 sc0 sc1")
    e(f"v_readfirstlane_b32 s{sT0+2}, v17\ns_sub_u32 s{sT0+1}, s{sT0+1}, 1\ns_cmp_eq_u32 s{sT0+1}, 0")
    e.raw("s_cbranch_scc1 LA_go")
    e(f"s_cmp_eq_u32 s{sT0+2}, 0")
    e.raw("s_cbranch_scc1 LA_poll")
    e.label("LA_go")
    for w in range(1, 8): e(f"v_add_f32 v20, v20, v{20+w}")
    e(f"s_mul_i32 s{sT0}, s{sREP}, 1536\ns_add_u32 s{sT0}, s{sT0}, {WS_SUM}")
    e(f"buffer_atomic_add_f32 v20, v15, s[{sWS}:{sWS+3}], s{sT0} offen")
    e.label("LA_end")
    e.raw("s_endpgm")

def kernel_a(name, prio=True):
    e = Emit()
    prologue(e)
    for s in range(4):
        e.wait(lgkm=0, vm=0); e("s_barrier")
        if s == 1: side2(e)
        if s == 2: side3(e)
        conv(e, s)
        if s < 3:
            e("s_barrier")
            for t in range(4*s+5, 4*s+9): dma_pair(e, t)
        if s == 0: side1(e)
        layernorm(e)
        e(f"s_add_u32 s{sT0}, s{sLNO}, {s*8*6144}\ns_add_u32 s{sT0+1}, s{sT0}, 4096")
        for t in range(6): e(f"buffer_store_dwordx4 {R(LN+4*t,4)}, v{vB0}, s[{sWS}:{sWS+3}], s{sT0+(t>>2)} offen offset:{1024*(t&3)}")
        gemm(e, prio)
    e("s_barrier")
    finish(e)
    return khead(name) + e.text() + "\n" + kdesc(name)
```

```python
from asm import *
from common import *
def fragB(F): return 8192 + 1024 * F if F < 56 else 73728 + 1024 * (F - 56)
vLANE = 1; vB = (2, 3, 4); vONE = 5; vOX = 6; vOX2 = 7; vOD = 8; vOS = 9; vHALF = 10
ACC = 16; LN = 112; D = 160; T = 224; BIAS = 232; W = 240; ONES = 252
sX = 4; sWS = 8; sOUT = 12; sG = 16
sWAVE = 32; sPB = 33; sLNO = 34; sPERM0 = 35; sPERM1 = 36; sT0 = 44
sTILE = 52
sLNS = 60

def salu_fragaddr(e, dst, F):
    e(f"s_cmp_ge_u32 s{F}, 56\ns_cselect_b32 s{dst}, 16, 8\ns_add_u32 s{dst}, s{dst}, s{F}\ns_lshl_b32 s{dst}, s{dst}, 10")

def ln_loads(tile, base):
    return [f"buffer_load_dwordx4 {R(base+4*t,4)}, v{vB[0]}, s[{sWS}:{sWS+3}], s{sLNS+2*tile+(t>>2)} offen offset:{1024*(t&3)}" for t in range(6)]
def x_loads(tile, base):
    o = [f"buffer_load_dwordx4 {R(base+4*k,4)}, v{vOX}, s[{sX}:{sX+3}], s{sTILE+2*tile} offen offset:{64*(k>>1)+16*(k&1)}" for k in range(4)]
    o += [f"buffer_load_dwordx4 {R(base+16+4*u,4)}, v{vOX2}, s[{sX}:{sX+3}], s{sTILE+2*tile} offen offset:{128+32*u}" for u in range(2)]
    return o
def x_perms(base, E):
    o = []
    for u in range(2):
        X = base + 8*u
        for jj in range(4):
            o.append(f"v_perm_b32 v{E+4*u+jj}, v{X+2*jj+1}, v{X+2*jj}, s{sPERM0}")
            o.append(f"v_perm_b32 v{X+jj}, v{X+2*jj+1}, v{X+2*jj}, s{sPERM1}")
    return o
def selectors(SEL, tmp):
    o = [f"v_and_b32 v{tmp}, 1, v{vLANE}", f"v_lshlrev_b32 v{tmp}, 4, v{tmp}", f"v_mov_b32 v{tmp+1}, 0x3f80", f"v_lshlrev_b32 v{tmp}, v{tmp}, v{tmp+1}",
         f"v_bfe_u32 v{tmp+1}, v{vLANE}, 1, 4", f"v_lshlrev_b32 v{tmp+2}, 2, v{vHALF}", f"v_sub_u32 v{tmp+1}, v{tmp+1}, v{tmp+2}"]
    for k in range(8):
        u, d = k >> 2, k & 3
        o += [f"v_xor_b32 v{tmp+2}, {8*u+d}, v{tmp+1}", f"v_min_u32 v{tmp+2}, 1, v{tmp+2}", f"v_subrev_u32 v{tmp+2}, 1, v{tmp+2}", f"v_and_b32 v{SEL+k}, v{tmp+2}, v{tmp}"]
    return o
def resid_mfma(tile_acc, base, E, SEL):
    o = []
    for u in range(2):
        for blk, src in ((0, E+4*u), (1, base+8*u), (2, base+16+4*u)):
            a = tile_acc + 16*blk
            o.append(f"v_mfma_f32_32x32x16_bf16 {R(a,16)}, {R(src,4)}, {R(SEL+4*u,4)}, {R(a,16)}")
    return o
def bias_mfma(tile_acc):
    return [f"v_mfma_f32_32x32x16_bf16 {R(tile_acc+16*b,16)}, {R(ONES,4)}, {R(BIAS+2*b,4)}, 0" for b in range(3)]

def prologue(e):
    e("s_cmp_ge_u32 s2, 256"); e.raw("s_cbranch_scc1 LB_end")
    e("s_load_dwordx2 s[20:21], s[0:1], 0\ns_load_dwordx2 s[22:23], s[0:1], 32\ns_load_dwordx2 s[24:25], s[0:1], 48\ns_load_dwordx2 s[26:27], s[0:1], 64")
    e(f"v_and_b32 v{vLANE}, 63, v0\nv_lshrrev_b32 v15, 6, v0\nv_lshlrev_b32 v{vB[0]}, 4, v{vLANE}")
    e(f"v_readfirstlane_b32 s{sWAVE}, v15")
    e(f"v_add_u32 v{vB[1]}, 0x10000, v{vB[0]}\nv_add_u32 v{vB[2]}, 0x20000, v{vB[0]}\nv_mov_b32 v{vONE}, 1\nv_lshrrev_b32 v{vHALF}, 5, v{vLANE}")
    e(f"v_lshlrev_b32 v11, 2, v0\nv_lshlrev_b32 v12, 1, v0")
    e.raw("s_waitcnt lgkmcnt(0)")
    srd(e, sX, 20, XBYTES); srd(e, sG, 22, 768); srd(e, sOUT, 24, XBYTES); srd(e, sWS, 26, WSBYTES)
    ST = 76
    for r in range(NREP):
        e(f"s_mov_b32 s{sT0}, {WS_SUM + 1536*r}\nbuffer_load_dword v{ST+r}, v11, s[{sWS}:{sWS+3}], s{sT0} offen")
    e(f"buffer_load_ushort v{ST+NREP}, v12, s[{sG}:{sG+3}], 0 offen")
    WR = 16
    e(f"s_mul_i32 s{sT0}, s{sWAVE}, 9216\ns_add_u32 s{sT0}, s{sT0}, {WS_W2R}")
    for k in range(9):
        e(f"buffer_load_dwordx4 {R(WR+4*k,4)}, v{vB[0]}, s[{sWS}:{sWS+3}], s{sT0} offen offset:{1024*(k%4)}")
        if k % 4 == 3: e(f"s_add_u32 s{sT0}, s{sT0}, 4096")
    e(f"v_and_b32 v13, 31, v{vLANE}\nv_lshlrev_b32 v14, 3, v13\nv_lshlrev_b32 v15, 2, v13\ns_mov_b32 s{sT0}, {WS_B2}")
    e(f"buffer_load_dwordx2 v[96:97], v14, s[{sWS}:{sWS+3}], s{sT0} offen\nbuffer_load_dword v98, v15, s[{sWS}:{sWS+3}], s{sT0} offen offset:256")
    for k in range(2):
        e(f"s_lshl_b32 s{sT0}, s{sWAVE}, 1\ns_add_u32 s{sT0}, s{sT0}, {k}\ns_lshl_b32 s{sT0+1}, s{sT0}, 10\ns_add_u32 s{sT0+2}, s{sT0+1}, {WS_LUT}")
        e(f"s_cmp_ge_u32 s{sT0}, 8\ns_cselect_b32 s{sT0+3}, {65536-8192}, 0\ns_add_u32 m0, s{sT0+1}, s{sT0+3}\ns_nop 0")
        e(f"buffer_load_dwordx4 v{vB[0]}, s[{sWS}:{sWS+3}], s{sT0+2} offen lds")
    e(f"s_lshr_b32 s{sT0}, s2, 4\ns_lshl_b32 s{sT0}, s{sT0}, 5\ns_lshr_b32 s{sT0+1}, s{sWAVE}, 1\ns_lshl_b32 s{sT0+1}, s{sT0+1}, 1\ns_add_u32 s{sT0}, s{sT0}, s{sT0+1}\ns_lshl_b32 s{sT0}, s{sT0}, 9")
    e(f"s_and_b32 s{sT0+1}, s2, 15\ns_lshl_b32 s{sT0+1}, s{sT0+1}, 5\ns_add_u32 s{sT0}, s{sT0}, s{sT0+1}\ns_and_b32 s{sT0+1}, s{sWAVE}, 1\ns_lshl_b32 s{sT0+1}, s{sT0+1}, 4\ns_add_u32 s{sT0}, s{sT0}, s{sT0+1}\ns_mul_i32 s{sPB}, s{sT0}, 192")
    e(f"s_lshl_b32 s{sLNO}, s2, 5\ns_add_u32 s{sLNO}, s{sLNO}, s{sWAVE}\ns_mul_i32 s{sLNO}, s{sLNO}, 6144")
    for s in range(4):
        e(f"s_add_u32 s{sTILE+2*s}, s{sPB}, {8*s*ROWB}\ns_add_u32 s{sTILE+2*s+1}, s{sPB}, {(8*s+1)*ROWB}")
        e(f"s_add_u32 s{sLNS+2*s}, s{sLNO}, {s*8*6144}\ns_add_u32 s{sLNS+2*s+1}, s{sLNO}, {s*8*6144+4096}")
    e(f"v_bfe_u32 v14, v{vLANE}, 4, 1\nv_mul_u32_u24 v14, {ROWB}, v14\nv_and_b32 v15, 15, v{vLANE}\nv_mul_u32_u24 v15, 192, v15\nv_add_u32 v14, v14, v15")
    e(f"v_lshl_add_u32 v{vOX}, v{vHALF}, 5, v14\nv_lshl_add_u32 v{vOX2}, v{vHALF}, 4, v14")
    e(f"v_mul_u32_u24 v14, 768, v{vHALF}\nv_lshl_add_u32 v{vOD}, v13, 2, v14\nv_lshl_add_u32 v{vOS}, v13, 1, v14\nv_add_u32 v{vOS}, 128, v{vOS}")
    for l in ln_loads(0, LN) + ln_loads(1, LN+24): e(l)
    for k in range(9):
        e(f"s_mul_i32 s{sT0}, s{sWAVE}, 9\ns_add_u32 s{sT0}, s{sT0}, {k}\ns_lshl_b32 s{sT0+2}, s{sT0}, 10\ns_add_u32 s{sT0+2}, s{sT0+2}, {WS_W1B}")
        e(f"s_mul_i32 s{sT0+1}, s{sT0}, 43\ns_lshr_b32 s{sT0+1}, s{sT0+1}, 8\ns_mul_i32 s{sT0+1}, s{sT0+1}, 6\ns_add_u32 s{sT0}, s{sT0}, s{sT0+1}")
        salu_fragaddr(e, sT0+1, sT0)
        e(f"s_mov_b32 m0, s{sT0+1}\ns_nop 0\nbuffer_load_dwordx4 v{vB[0]}, s[{sWS}:{sWS+3}], s{sT0+2} offen lds")
    for l in x_loads(0, D) + x_loads(1, D+24): e(l)
    e(f"s_mov_b32 s{sPERM0}, 0x05040100\ns_mov_b32 s{sPERM1}, 0x07060302")
    e("v_mul_u32_u24 v13, 1366, v0\nv_lshrrev_b32 v13, 16, v13\nv_mul_u32_u24 v14, 48, v13\nv_sub_u32 v14, v0, v14")
    e("v_mul_u32_u24 v13, 3, v13\nv_lshrrev_b32 v15, 1, v13\nv_and_b32 v13, 1, v13\nv_mul_u32_u24 v15, 12, v15\nv_mul_u32_u24 v13, 3, v13\nv_add3_u32 v13, v13, v15, 6")
    e("v_cmp_le_u32 vcc, 56, v13\ns_nop 1\nv_cndmask_b32 v15, 8, 16, vcc\nv_add_u32 v13, v13, v15\nv_lshlrev_b32 v13, 10, v13\nv_lshl_add_u32 v13, v14, 2, v13")
    RED = fragB(6) + 512
    for r in range(1, NREP): e(f"v_add_f32 v{ST}, v{ST}, v{ST+r}")
    e(f"v_mov_b32 v14, {0x358637bd:#x}\nv_fmac_f32 v14, {K_INVK2:#x}, v{ST}\nv_sqrt_f32 v14, v14")
    e(f"v_cmp_gt_u32 vcc, 384, v0\ns_nop 1\nv_cndmask_b32 v14, 0, v14, vcc\nv_mov_b32 v15, v14")
    wave_reduce_dpp(e, "v_add_f32", 15)
    e(f"v_readlane_b32 s{sT0}, v15, 63\ns_lshl_b32 s{sT0+1}, s{sWAVE}, 2\ns_add_u32 s{sT0+1}, s{sT0+1}, {RED}\ns_nop 2\nv_mov_b32 v15, s{sT0}\nv_mov_b32 v12, s{sT0+1}\nds_write_b32 v12, v15")
    e.wait(lgkm=0); e("s_barrier")
    e(f"v_mov_b32 v12, {RED}\nds_read_b128 v[88:91], v12\nds_read_b128 v[92:95], v12 offset:16")
    for r in range(1, 8): e(f"v_add_f32 v88, v88, v{88+r}")
    e(f"v_mov_b32 v15, {0x358637bd:#x}\nv_fmac_f32 v15, {0x3b2aaaab:#x}, v88\nv_rcp_f32 v15, v15\nv_lshlrev_b32 v{ST+NREP}, 16, v{ST+NREP}\nv_mul_f32 v14, v14, v15")
    e(f"v_fma_f32 v14, v14, v{ST+NREP}, 1.0\nv_mul_f32 v14, {K_NINVK:#x}, v14")
    e(f"v_cmp_gt_u32 vcc, 384, v0\ns_and_saveexec_b64 s[{sT0}:{sT0+1}], vcc\nds_write_b32 v13, v14\ns_mov_b64 exec, -1")
    e.wait(lgkm=0); e("s_barrier")
    SV = 52
    e(f"s_mul_i32 s{sT0}, s{sWAVE}, 3\ns_lshr_b32 s{sT0+1}, s{sT0}, 1\ns_and_b32 s{sT0}, s{sT0}, 1\ns_mul_i32 s{sT0+1}, s{sT0+1}, 12\ns_mul_i32 s{sT0}, s{sT0}, 3\ns_add_u32 s{sT0}, s{sT0}, s{sT0+1}\ns_add_u32 s{sT0}, s{sT0}, 6")
    salu_fragaddr(e, sT0+1, sT0)
    e(f"v_lshlrev_b32 v12, 4, v{vHALF}\nv_add_u32 v12, s{sT0+1}, v12")
    for i in range(3):
        for k in range(2): e(f"ds_read_b128 {R(SV+8*i+4*k,4)}, v12 offset:{64*i+32*k}")
    for b in range(3):
        e(f"v_cvt_pk_bf16_f32 v13, v{96+b}, v{96+b}\nv_lshlrev_b32 v13, 16, v13\nv_sub_f32 v14, v{96+b}, v13\nv_cvt_pk_bf16_f32 v{BIAS+2*b}, v13, v14\nv_mov_b32 v{BIAS+2*b+1}, 0")
    e(f"v_mov_b32 v{BIAS+6}, 0\nv_mov_b32 v{BIAS+7}, 0\nv_subrev_u32 v13, 1, v{vHALF}\nv_and_b32 v{ONES}, 0x3f803f80, v13\nv_mov_b32 v{ONES+1}, 0\nv_mov_b32 v{ONES+2}, 0\nv_mov_b32 v{ONES+3}, 0")
    e.wait(lgkm=0)
    for i in range(3):
        e(f"s_mul_i32 s{sT0}, s{sWAVE}, 3\ns_add_u32 s{sT0}, s{sT0}, {i}\ns_lshr_b32 s{sT0+1}, s{sT0}, 1\ns_and_b32 s{sT0}, s{sT0}, 1\ns_mul_i32 s{sT0+1}, s{sT0+1}, 12\ns_mul_i32 s{sT0}, s{sT0}, 3\ns_add_u32 s{sT0}, s{sT0}, s{sT0+1}\ns_add_u32 s{sT0}, s{sT0}, 6")
        for b in range(3):
            f = WR + 12*i + 4*b
            for jj in range(4):
                e(f"v_lshlrev_b32 v13, 16, v{f+jj}\nv_and_b32 v14, 0xffff0000, v{f+jj}\nv_mul_f32 v13, v13, v{SV+8*i+2*jj}\nv_mul_f32 v14, v14, v{SV+8*i+2*jj+1}\nv_cvt_pk_bf16_f32 v{f+jj}, v13, v14")
            salu_fragaddr(e, sT0+1, sT0)
            e(f"v_add_u32 v12, s{sT0+1}, v{vB[0]}\nds_write_b128 v12, {R(f,4)}\ns_add_u32 s{sT0}, s{sT0}, 1")
    for l in selectors(T, 11): e(l)
    for l in x_perms(D, D+48) + x_perms(D+24, D+56): e(l)
    e.wait(lgkm=0)
    for l in bias_mfma(ACC) + bias_mfma(ACC+48) + resid_mfma(ACC, D, D+48, T) + resid_mfma(ACC+48, D+24, D+56, T): e(l)
    e.wait(lgkm=0, vm=0); e("s_barrier")

def main(e, lmask, nw=3, tor=0.30):
    sc = Sched()
    st = {'f': 0, 'T': 0}
    NS = 24.0
    def frag(tm, F):
        sl = W + 4*(st['f'] % nw); st['f'] += 1
        a = fragB(F)
        sc.add(tm - (2*(nw-1) - 0.02)/NS, f"ds_read_b128 {R(sl,4)}, v{vB[a >> 16]} offset:{a & 65535}")
        return sl
    def G1(t0, j):
        for t in range(6):
            tm = t0 + 2*t/NS; sl = frag(tm, 12*j + t)
            for x in range(2):
                d = D + 32*(j % 2) + 16*x
                sc.add(tm + x/NS, f"v_mfma_f32_32x32x16_bf16 {R(d,16)}, {R(sl,4)}, {R(LN+24*x+4*t,4)}, {'0' if t == 0 else R(d,16)}")
    def G2(t0, j):
        for u in range(2):
            for b in range(3):
                tm = t0 + 2*(3*u+b)/NS; sl = frag(tm, 12*j + 6 + 3*u + b)
                for x in range(2):
                    y = D + 32*(j % 2) + 16*x + 8*u; a = ACC + 48*x + 16*b
                    sc.add(tm + x/NS, f"v_mfma_f32_32x32x16_bf16 {R(a,16)}, {R(y,4)}, {R(sl,4)}, {R(a,16)}")
    def GELU(t0, j):
        for q in range(4):
            u, x = q >> 1, q & 1
            d = D + 32*(j % 2) + 16*x + 8*u
            tq = t0 + (1 + 6*q)/NS
            Lp = [p for p in range(4) if (lmask[j] >> (4*u+p)) & 1]; Vp = [p for p in range(4) if p not in Lp]
            for k, p in enumerate(Lp):
                ts = tq + (k + 1)/NS
                for z in range(2):
                    r = d + 2*p + z
                    sc.add(ts - 0.002, f"v_lshlrev_b32_sdwa v{r}, v{vONE}, v{r} {SDWA1}")
                    sc.add(ts + 0.002, f"ds_read_u16_d16{'_hi' if z else ''} v{r}, v{r}")
            els = [(d + 2*p + z) for p in Vp for z in range(2)]
            tr = []
            for r in els: tr.append(T + st['T'] % 8); st['T'] += 1
            stages = [lambda r, t: f"v_fmaak_f32 v{t}, v{r}, v{r}, {K_A:#x}", lambda r, t: f"v_mul_f32 v{t}, v{r}, v{t}", lambda r, t: f"v_exp_f32 v{t}, v{t}",
                      lambda r, t: f"v_add_f32 v{t}, 1.0, v{t}", lambda r, t: f"v_rcp_f32 v{t}, v{t}", lambda r, t: f"v_mul_f32 v{t}, v{r}, v{t}"]
            for si, f in enumerate(stages):
                for k, (r, t) in enumerate(zip(els, tr)):
                    sc.add(tq + (0.3 + si + 0.6*k/max(len(els),1))/NS, f(r, t))
            for k, p in enumerate(Vp):
                sc.add(tq + (6.3 + 0.1*k)/NS, f"v_cvt_pk_bf16_f32 v{d+p}, v{tr[2*k]}, v{tr[2*k+1]}")
            for k, p in enumerate(Lp):
                sc.add(tq + max(tor, 6.6/NS) + 0.001*k, f"v_or_b32 v{d+p}, v{d+2*p}, v{d+2*p+1}")
    def epilogue(t0, pair, span):
        ops = []
        for x in range(2):
            a = ACC + 48*x; tile = 2*pair + x
            for r in range(16):
                g, i = r >> 2, r & 3
                so = sTILE + 2*tile + (g >> 1); off = (8*(g & 1) + i)*192
                ops.append([f"v_cvt_pk_bf16_f32 v{a+r}, v{a+r}, v{a+16+r}", f"buffer_store_dword v{a+r}, v{vOD}, s[{sOUT}:{sOUT+3}], s{so} offen offset:{off}"])
                if r % 2 == 0:
                    ops.append([f"v_cvt_pk_bf16_f32 v{a+32+r}, v{a+32+r}, v{a+32+r+1}", f"buffer_store_short v{a+32+r}, v{vOS}, s[{sOUT}:{sOUT+3}], s{so} offen offset:{off}",
                                f"buffer_store_short_d16_hi v{a+32+r}, v{vOS}, s[{sOUT}:{sOUT+3}], s{so} offen offset:{off+192}"])
        for k, grp in enumerate(ops):
            tm = t0 + span*k/len(ops)
            sc.add(tm, grp[0])
            for g2 in grp[1:]: sc.add(tm + span*2.5/len(ops), g2)
    for pair in range(2):
        b = 13*pair
        G1(b - 0.5, 0)
        if pair == 1:
            epilogue(b + 0.02, 0, 0.45)
        G1(b + 0.5, 1)
        if pair == 1:
            for k, l in enumerate(bias_mfma(ACC) + bias_mfma(ACC+48)): sc.add(b + 0.52 + 0.075*k + 0.01, l)
        for j in range(12):
            GELU(b + j, j)
            if j == 10:
                if pair == 0:
                    for k, l in enumerate(ln_loads(2, LN) + ln_loads(3, LN+24)): sc.add(b + 11.0 + 0.02*k, l)
                else:
                    for k, l in enumerate(x_loads(2, LN) + x_loads(3, LN+24)): sc.add(b + 11.0 + 0.02*k, l)
            G2(b + j + 1, j)
            if j + 2 < 12: G1(b + j + 1.5, j + 2)
    b = 13
    E = D; SEL = D + 16
    for k, l in enumerate(selectors(SEL, 11)): sc.add(b + 11.55 + 0.004*k, l)
    for k, l in enumerate(x_perms(LN, E) + x_perms(LN+24, E+8)): sc.add(b + 12.1 + 0.01*k, l)
    for k, l in enumerate(resid_mfma(ACC, LN, E, SEL) + resid_mfma(ACC+48, LN+24, E+8, SEL)): sc.add(b + 12.5 + k/NS, l)
    epilogue(b + 13.05, 1, 0.5)
    sc.emit(e)

def kernel_b(name, lmask, **kw):
    e = Emit()
    prologue(e)
    main(e, lmask, **kw)
    e.label("LB_end")
    e.raw("s_endpgm")
    return khead(name) + e.text() + "\n" + kdesc(name)
```

```python
import sys, argparse
import ka, kb
HEADER = open('standalone__modern_conv_block_slak__vision.s.ref').read().split('; Override launch')[0]
def build(lmask=0xCE, prio=True, **kw):
    lm = [lmask]*12 if isinstance(lmask, int) else lmask
    ka.LMASK_B[:] = lm
    s = HEADER
    s += "; @launch kernel=pass1_kernel grid=(256,1,1) block=(512,1,1) lds=163840\n"
    s += "; @launch kernel=pass2_kernel grid=(256,1,1) block=(512,1,1) lds=163840\n"
    s += '.amdgcn_target "amdgcn-amd-amdhsa--gfx950"\n.text\n'
    s += ka.kernel_a('pass1_kernel', prio)
    s += kb.kernel_b('pass2_kernel', lm, **kw)
    return s
if __name__ == '__main__':
    out = sys.argv[1] if len(sys.argv) > 1 else 'standalone__modern_conv_block_slak__vision.s'
    opts = eval('dict(' + (sys.argv[2] if len(sys.argv) > 2 else '') + ')')
    open(out, 'w').write(build(**opts))
```

```python
import re
RE_V = re.compile(r'(?<![a-z_0-9])([va])(?:\[(\d+):(\d+)\]|(\d+)(?![\w]))')
TRANS = ('v_exp_f32','v_rcp_f32','v_rsq_f32','v_sqrt_f32','v_log_f32','v_sin_f32','v_cos_f32','v_rcp_iflag_f32')
def regs_of(tok):
    out = []
    for m in RE_V.finditer(tok):
        base = 0 if m.group(1) == 'v' else 1000
        if m.group(2) is not None: out += [base + r for r in range(int(m.group(2)), int(m.group(3)) + 1)]
        else: out.append(base + int(m.group(4)))
    return out
def split_ops(s):
    ops = []; depth = 0; cur = ''
    for ch in s:
        if ch == '[': depth += 1
        if ch == ']': depth -= 1
        if ch == ',' and depth == 0: ops.append(cur.strip()); cur = ''
        else: cur += ch
    if cur.strip(): ops.append(cur.strip())
    return ops
class Ins:
    __slots__ = ('text','op','kind','defs','uses','passes','srcc','sdefs','suses')
def classify(text):
    I = Ins(); I.text = text
    parts = text.split(None, 1); op = parts[0]; I.op = op
    ops = split_ops(parts[1]) if len(parts) > 1 else []
    I.defs = []; I.uses = []; I.passes = 0; I.srcc = []
    if op.startswith('v_mfma') or op.startswith('v_smfmac'):
        I.kind = 'mfma'; I.defs = regs_of(ops[0])
        I.passes = 8 if '32x32' in op else 4
        if op.startswith('v_mfma'):
            I.uses = regs_of(ops[1]) + regs_of(ops[2]); I.srcc = regs_of(ops[3].split()[0])
        else:
            I.uses = regs_of(ops[1]) + regs_of(ops[2]) + regs_of(ops[3].split()[0]); I.srcc = list(I.defs)
    elif op.startswith('ds_'):
        if op.startswith('ds_read') or op.startswith('ds_bpermute') or op.startswith('ds_swizzle') or '_rtn' in op:
            I.kind = 'ds_r'; I.defs = regs_of(ops[0]); I.uses = sum((regs_of(o.split()[0]) for o in ops[1:]), [])
        else:
            I.kind = 'ds_w'; I.uses = sum((regs_of(o.split()[0]) for o in ops), [])
    elif op.startswith('buffer_') or op.startswith('global_'):
        if op in ('buffer_wbl2', 'buffer_inv'):
            I.kind = 'vm_w'
        elif '_load' in op:
            if text.rstrip().endswith(' lds') or ' lds ' in text:
                I.kind = 'vm_w'; I.uses = regs_of(ops[0])
            else:
                I.kind = 'vm_r'; I.defs = regs_of(ops[0]); I.uses = sum((regs_of(o.split()[0]) for o in ops[1:]), [])
        elif 'atomic' in op and ' sc0' in text:
            I.kind = 'vm_r'; I.defs = regs_of(ops[0]); I.uses = sum((regs_of(o.split()[0]) for o in ops), [])
        else:
            I.kind = 'vm_w'; I.uses = sum((regs_of(o.split()[0]) for o in ops), [])
    elif op.startswith('v_'):
        I.kind = 'trans' if op.replace('_e32','').replace('_e64','') in TRANS else 'valu'
        if op.startswith('v_cmp'):
            I.uses = sum((regs_of(o) for o in ops[1:]), [])
        elif op.startswith('v_readfirstlane') or op.startswith('v_readlane'):
            I.uses = regs_of(ops[1])
        elif op.startswith('v_permlane') and 'swap' in op:
            I.defs = regs_of(ops[0]) + regs_of(ops[1]); I.uses = list(I.defs)
        else:
            I.defs = regs_of(ops[0])
            I.uses = sum((regs_of(o.split()[0] if ' ' in o and not o.startswith('-') else o) for o in ops[1:]), [])
            if op.startswith('v_fmac') or op.startswith('v_dot2c') or 'UNUSED_PRESERVE' in text or '_dpp' in op or op.startswith('v_writelane'):
                I.uses += I.defs
    else:
        I.kind = 'salu'
    return I
class Emit:
    def __init__(self):
        self.lines = []
        self.hist = []
        self.lgkm = []
        self.vm = []
        self.nnop = 0; self.nwait = 0; self.count = 0
        self.lage = []
        self.merge = 0
    def raw(self, text):
        self.lines.append(text)
    def label(self, name):
        self.lines.append(name + ':')
    def _states(self, n):
        while n > 0:
            k = min(n, 16); self.lines.append(f's_nop {k-1}'); self.hist += [None] * k; n -= k; self.nnop += 1
    def wait(self, lgkm=None, vm=None):
        t = []
        if vm is not None:
            vm = min(vm, 63); t.append(f'vmcnt({vm})'); self.vm = self.vm[len(self.vm) - vm:] if vm < len(self.vm) else self.vm
            if vm == 0: self.vm = []
        if lgkm is not None:
            lgkm = min(lgkm, 15); t.append(f'lgkmcnt({lgkm})')
            if lgkm < len(self.lgkm):
                self.lage = self.lage[len(self.lgkm) - lgkm:]; self.lgkm = self.lgkm[len(self.lgkm) - lgkm:]
            if lgkm == 0: self.lgkm = []; self.lage = []
        self.lines.append('s_waitcnt ' + ' '.join(t)); self.hist.append(None); self.nwait += 1
    def __call__(self, text):
        for t in text.split('\n'):
            t = t.strip()
            if t: self.one(t)
    def one(self, text):
        I = classify(text)
        touched = set(I.uses) | set(I.defs) | set(I.srcc)
        need_l = None; need_v = None
        for idx, d in enumerate(self.lgkm):
            if d & touched: need_l = len(self.lgkm) - 1 - idx
        for idx, d in enumerate(self.vm):
            if d & touched: need_v = len(self.vm) - 1 - idx
        if I.kind == 'ds_r' and need_l is not None and not (set(I.uses) & set().union(*self.lgkm)):
            need_l = None
        if need_l is not None and self.merge:
            young = sum(1 for a in self.lage if self.count - a < self.merge)
            need_l = min(need_l, young)
        if need_l is not None or need_v is not None: self.wait(need_l, need_v)
        need = 0
        H = self.hist
        for dist in range(1, min(len(H), 20) + 1):
            P = H[-dist]
            if P is None: continue
            gap = dist - 1
            req = 0
            pd = set(P.defs)
            if P.kind == 'mfma':
                big = P.passes == 8
                if I.kind == 'mfma':
                    if pd & set(I.uses): req = 12 if big else 8
                    elif pd & set(I.srcc):
                        if not (P.passes == I.passes and P.defs == I.srcc): req = 10 if big else 6
                    elif pd & set(I.defs): req = 10 if big else 6
                elif I.kind != 'salu':
                    if pd & touched: req = 12 if big else 8
                    if I.kind in ('valu','trans') and set(P.srcc) & set(I.defs): req = max(req, 7 if big else 3)
            elif P.kind in ('valu', 'trans'):
                if I.kind == 'mfma' and pd & (set(I.uses) | set(I.srcc)): req = 2
                if P.kind == 'trans' and I.kind in ('valu',) and pd & set(I.uses): req = max(req, 1)
                if (I.op.startswith('v_permlane') or '_dpp' in I.op) and pd & set(I.uses): req = max(req, 2)
                if (I.op.startswith('v_readlane') or I.op.startswith('v_readfirstlane')) and pd & set(I.uses): req = max(req, 1)
                if 'dst_sel:WORD' in P.text and I.kind in ('valu','trans') and pd & touched: req = max(req, 1)
            elif P.kind == 'vm_w' and ('x4' in P.op or 'x3' in P.op) and 'store' in P.op:
                if I.kind in ('valu','trans','mfma') and set(P.uses) & set(I.defs): req = 2
            if req - gap > need: need = req - gap
        if need > 0: self._states(need)
        self.lines.append(text); self.hist.append(I); self.count += 1
        if len(self.hist) > 64: self.hist = self.hist[-32:]
        if I.kind == 'ds_r': self.lgkm.append(set(I.defs)); self.lage.append(self.count)
        elif I.kind == 'ds_w': self.lgkm.append(set()); self.lage.append(self.count)
        elif I.kind == 'vm_r': self.vm.append(set(I.defs))
        elif I.kind == 'vm_w': self.vm.append(set())
    def text(self):
        return '\n'.join(self.lines)

class Sched:
    def __init__(self):
        self.ops = []
    def add(self, t, text):
        self.ops.append((t, len(self.ops), text))
    def check(self, order):
        pos = {idx: p for p, (_, idx, _) in enumerate(order)}
        lastw = {}; readers = {}
        bad = 0
        for (t, idx, text) in self.ops:
            I = classify(text)
            uses = set(I.uses) | set(I.srcc); defs = set(I.defs)
            for r in uses:
                if r in lastw and pos[lastw[r]] > pos[idx]:
                    bad += 1; print(f"RAW violated r{r}: '{self.ops[lastw[r]][2]}' t={self.ops[lastw[r]][0]:.3f} must precede '{text}' t={t:.3f}")
            for r in defs:
                if r in lastw and pos[lastw[r]] > pos[idx]:
                    bad += 1; print(f"WAW violated r{r}: '{self.ops[lastw[r]][2]}' t={self.ops[lastw[r]][0]:.3f} must precede '{text}' t={t:.3f}")
                for q in readers.get(r, ()):
                    if q != idx and pos[q] > pos[idx]:
                        bad += 1; print(f"WAR violated r{r}: '{self.ops[q][2]}' t={self.ops[q][0]:.3f} must precede '{text}' t={t:.3f}")
            for r in uses: readers.setdefault(r, []).append(idx)
            for r in defs: lastw[r] = idx; readers[r] = []
            if bad > 10: break
        assert bad == 0, "schedule violates dependencies"
    def emit(self, e):
        order = sorted(self.ops, key=lambda o: (o[0], o[1]))
        self.check(order)
        for (_, _, text) in order: e(text)
        self.ops = []
```

```python
XBYTES = 50331648
ROWB = 98304
WSBYTES = 268435456
WS_LN = 0
WS_W1B = 50331648
WS_W2R = WS_W1B + 73728
WS_LUT = WS_W2R + 73728
WS_B2 = WS_LUT + 16384
WS_SUM = WS_B2 + 512
NREP = 8
K_A = 0x409d30fc
K_NEGK = 0xbeeff558
K_NINVK = 0xc0088e99
K_INVK2 = 0x4091afa4
OOB = 0x80000000
SDWA1 = "dst_sel:DWORD dst_unused:UNUSED_PAD src0_sel:DWORD src1_sel:WORD_1"
def srd(e, s, ptr, size):
    e(f"s_mov_b32 s{s}, s{ptr}\ns_and_b32 s{s+1}, s{ptr+1}, 0xffff\ns_mov_b32 s{s+2}, {size}\ns_mov_b32 s{s+3}, 0x20000")
def R(a, n): return f"v[{a}:{a+n-1}]"
def kdesc(name, nv=256, ns=102):
    return f""".section .rodata,"a"
.p2align 6
.amdhsa_kernel {name}
  .amdhsa_next_free_vgpr {nv}
  .amdhsa_next_free_sgpr {ns}
  .amdhsa_accum_offset {nv}
  .amdhsa_group_segment_fixed_size 0
  .amdhsa_kernarg_size 72
  .amdhsa_user_sgpr_count 2
  .amdhsa_user_sgpr_kernarg_segment_ptr 1
  .amdhsa_system_sgpr_workgroup_id_x 1
  .amdhsa_float_denorm_mode_32 3
.end_amdhsa_kernel
.text
"""
def khead(name):
    return f""".globl {name}
.p2align 8
.type {name},@function
{name}:
"""
def gelu_y(e, y, x, t):
    e(f"v_fmaak_f32 v{t}, v{x}, v{x}, {K_A:#x}\nv_mul_f32 v{t}, v{x}, v{t}\nv_exp_f32 v{t}, v{t}\nv_add_f32 v{t}, 1.0, v{t}\nv_rcp_f32 v{t}, v{t}\nv_mul_f32 v{y}, v{x}, v{t}")
def wave_reduce_dpp(e, op, v, ident_ok=True):
    for c in ("row_shr:1", "row_shr:2", "row_shr:4", "row_shr:8"):
        e(f"{op}_dpp v{v}, v{v}, v{v} {c} row_mask:0xf bank_mask:0xf")
    e(f"{op}_dpp v{v}, v{v}, v{v} row_bcast:15 row_mask:0xa bank_mask:0xf")
    e(f"{op}_dpp v{v}, v{v}, v{v} row_bcast:31 row_mask:0xc bank_mask:0xf")

WS_STAMP = 64 << 20
class Stamps:
    def __init__(self, on): self.on = on; self.names = []; self.only = None if on is True else on
    def __call__(self, e, name, sc=None, t=None, real=False):
        if not self.on: return
        if self.only and name not in self.only.split() + ['rt0', 'rt1', 'entry', 'end']: return
        k = len(self.names); self.names.append(name); assert k < 17, name
        txt = f"s_{'memrealtime' if real else 'memtime'} s[{68+2*k}:{69+2*k}]"
        if sc is not None: sc.add(t, txt)
        else: e.raw(txt)
    def flush(self, e, sws, swave, which):
        if not self.on: return
        e.raw("s_waitcnt lgkmcnt(0)")
        e.raw(f"s_lshl_b32 s66, s2, 3\ns_add_u32 s66, s66, s{swave}\ns_lshl_b32 s66, s66, 7\ns_add_u32 s66, s66, {WS_STAMP + which*(1<<20)}")
        for k in range(len(self.names)): e.raw(f"v_writelane_b32 v255, s{68+2*k}, {k}")
        e.raw(f"v_lshlrev_b32 v254, 2, v1\ns_mov_b64 exec, 0xffffffff\nbuffer_store_dword v255, v254, s[{sws}:{sws+3}], s66 offen\ns_mov_b64 exec, -1")
```

```python
from asm import *
from common import *
RING = 90112; PAIRB = 13312; ROWL = 6656
SCR = RING + 5 * PAIRB
SCR_DW = SCR; SCR_MAX = SCR + 2048; SCR_DUMMY = SCR + 3072
W2L = RING
RED = RING; REDB = RING + 12288; B2F = SCR - 2048; MEANR = SCR - 1024
WS_SUM = 0x3000000; WS_CNT = WS_SUM + NREP * 1536
S0 = 101
def fragA(F): return 8192 + 1024 * F if F < 56 else 73728 + 1024 * (F - 56)
vLANE = 1; vB0 = 2; vB1 = 3; vOFA = 4; vOFB = 5; vONE = 6; vIDX = 7; vCB = 8; vAD = 11; vHALF = 14; vT = 15
SUM = 16; A1 = 40; A2 = 88; LNA = 136
ACC1 = 160; CBUF = 208; S1, S2 = 244, 245
POOL = 160; T1 = 224; W = 240
vB2 = 4; vOP = 5; BIAS = 8
ACC = 16; LN2 = 112; D = 160; T2 = 224; TMP = 232; CT = (252, 232)
sX = 4; sWS = 8; sW1 = 12; sDW = 16; sW2 = 20; sGB = 24; sDBG = 28; sOUT = 12; sG = 16
sWAVE = 32; sX0 = 33; sY0 = 34; sS = 35; sNS = 36; sDMA = 37; sLNO = 38; sMB = 39; sMA = 40; sREP = 41; sTK = 42; sFLAG = 43; sT0 = 44
sPG = 56; sPOUT = 60
sTILE = 52

def emit_prio(sc, e, n):
    if not n: return sc.emit(e)
    order = sorted(sc.ops, key=lambda o: (o[0], o[1])); sc.check(order)
    m = 0; k = 0
    e("s_setprio 3")
    for (_, _, text) in order:
        e(text)
        if text.startswith('v_mfma'):
            m += 1
            if m % n == 0: k += 1; e(f"s_setprio {3 - k % 4}")
    e("s_setprio 0"); sc.ops = []

class Cfg:
    prio1 = 12; prio2 = 12
    cls = "LLVLLV" * 4
    merge = 12
    prio = 0
    stamp = False
    st_mod = ""
    remap = True

def dma_ops(t, first=False, offA=vOFA, offB=vOFB):
    slot = (t % 5) * PAIRB + RING
    so = "0" if first else f"s{sT0}"
    pre = [] if first else [f"s_add_u32 s{sT0}, s{sDMA}, {2*t*ROWB}"]
    ga = pre + [f"s_add_u32 m0, s{sMA}, {slot}", "s_nop 0", f"buffer_load_dwordx4 v{offA}, s[{sX}:{sX+3}], {so} offen lds"]
    gb = pre + [f"s_add_u32 s{sT0+1}, s{sMB}, {slot}", f"s_cmp_lt_u32 s{sWAVE}, 5", f"s_cselect_b32 m0, s{sT0+1}, {SCR_DUMMY}", "s_nop 0",
                f"buffer_load_dwordx4 v{offB}, s[{sX}:{sX+3}], {so} offen lds"]
    return [ga, gb]

def lut_build(e, square, base):
    b = base
    e(f"v_lshrrev_b32 v{b}, 8, v0\nv_and_b32 v{b+1}, 255, v0\nv_lshlrev_b32 v{b+2}, 31, v{b}\nv_lshl_or_b32 v{b+2}, v{b+1}, 20, v{b+2}\nv_or_b32 v{b+2}, 0x8000, v{b+2}")
    e(f"v_lshlrev_b32 v{b}, 16, v{b}\nv_lshl_or_b32 v{b}, v{b+1}, 5, v{b}")
    X = b + 4; Y = b + 8; O = b + 12
    for q in range(0, 16, 4):
        for z in range(4): e(f"v_add_u32 v{X+z}, {(q+z)<<16:#x}, v{b+2}")
        for z in range(4): e(f"v_ldexp_f32 v{X+z}, v{X+z}, s{sS}")
        for z in range(4): e(f"v_fmaak_f32 v{Y+z}, v{X+z}, v{X+z}, {K_A:#x}")
        for z in range(4): e(f"v_mul_f32 v{Y+z}, v{X+z}, v{Y+z}")
        for z in range(4): e(f"v_exp_f32 v{Y+z}, v{Y+z}")
        for z in range(4): e(f"v_add_f32 v{Y+z}, 1.0, v{Y+z}")
        for z in range(4): e(f"v_rcp_f32 v{Y+z}, v{Y+z}")
        for z in range(4): e(f"v_mul_f32 v{Y+z}, v{X+z}, v{Y+z}")
        if square:
            for z in range(4): e(f"v_mul_f32 v{Y+z}, v{Y+z}, v{Y+z}")
        e(f"v_cvt_pk_bf16_f32 v{O+q//2}, v{Y}, v{Y+1}\nv_cvt_pk_bf16_f32 v{O+1+q//2}, v{Y+2}, v{Y+3}")
    e(f"ds_write_b128 v{b}, {R(O,4)}\nds_write_b128 v{b}, {R(O+4,4)} offset:16")

def prologue(e, c, st):
    e("s_cmp_ge_u32 s2, 256"); e.raw("s_cbranch_scc1 L_end")
    e("s_load_dwordx16 s[48:63], s[0:1], 0\ns_load_dwordx2 s[64:65], s[0:1], 64")
    e(f"v_and_b32 v{vLANE}, 63, v0\nv_lshrrev_b32 v{vT}, 6, v0\nv_lshlrev_b32 v{vB0}, 4, v{vLANE}")
    e(f"v_readfirstlane_b32 s{sWAVE}, v{vT}")
    e(f"v_add_u32 v{vB1}, 0x10000, v{vB0}\nv_mov_b32 v{vONE}, 1\nv_lshrrev_b32 v{vHALF}, 5, v{vLANE}")
    if c.remap:
        e(f"s_and_b32 s{sT0}, s2, 7\ns_lshl_b32 s{sT0}, s{sT0}, 5\ns_lshr_b32 s{sT0+1}, s2, 3\ns_add_u32 s3, s{sT0}, s{sT0+1}")
    else: e("s_mov_b32 s3, s2")
    e(f"s_and_b32 s{sX0}, s3, 15\ns_lshl_b32 s{sX0}, s{sX0}, 5\ns_lshr_b32 s{sY0}, s3, 4\ns_lshl_b32 s{sY0}, s{sY0}, 5")
    e(f"s_and_b32 s{sREP}, s2, {NREP-1}\ns_mov_b32 s{sS}, {S0}\ns_mov_b32 s{sFLAG}, 0")
    e(f"s_lshl_b32 s{sMA}, s{sWAVE}, 10\ns_add_u32 s{sMB}, s{sMA}, 8192")
    e(f"s_lshl_b32 s{sT0}, s{sY0}, 9\ns_add_u32 s{sT0}, s{sT0}, s{sX0}\ns_sub_u32 s{sT0}, s{sT0}, 513\ns_mul_i32 s{sDMA}, s{sT0}, 192")
    for (off, add, o0) in ((vOFA, 0, 24), (vOFB, 512, 25)):
        e(f"s_lshl_b32 s{sT0}, s{sWAVE}, 6\ns_add_u32 s{sT0}, s{sT0}, {add}")
        e(f"v_add_u32 v17, s{sT0}, v{vLANE}")
        e(f"v_cmp_le_u32 vcc, 416, v17\ns_nop 1\nv_cndmask_b32 v18, 0, 1, vcc")
        e(f"v_mul_u32_u24 v19, 416, v18\nv_sub_u32 v19, v17, v19")
        e(f"v_mul_u32_u24 v20, 5462, v19\nv_lshrrev_b32 v20, 16, v20")
        e(f"v_mul_u32_u24 v21, 12, v20\nv_sub_u32 v21, v19, v21")
        e(f"v_bfe_u32 v22, v20, 2, 2\nv_xor_b32 v21, v21, v22")
        e(f"v_lshl_add_u32 v22, v18, 9, v20\nv_mul_u32_u24 v22, 192, v22\nv_lshl_add_u32 v22, v21, 4, v22")
        e(f"v_add_u32 v23, s{sX0}, v20\nv_subrev_u32 v23, 1, v23\nv_mov_b32 v21, {OOB:#x}")
        e(f"v_cmp_gt_u32 vcc, 512, v23\nv_cmp_gt_u32 s[{sT0}:{sT0+1}], 34, v20\ns_and_b64 vcc, vcc, s[{sT0}:{sT0+1}]")
        e(f"v_cmp_gt_u32 s[{sT0}:{sT0+1}], v17, v{vONE}\nv_mov_b32 v26, 832\nv_cmp_gt_u32 s[{sT0}:{sT0+1}], v26, v17\ns_and_b64 vcc, vcc, s[{sT0}:{sT0+1}]\ns_nop 1\nv_cndmask_b32 v{off}, v21, v22, vcc")
        e(f"v_add_u32 v22, s{sDMA}, v22\nv_add_u32 v23, s{sY0}, v18\nv_cmp_lt_u32 s[{sT0}:{sT0+1}], 0, v23\ns_and_b64 vcc, vcc, s[{sT0}:{sT0+1}]\ns_nop 1\nv_cndmask_b32 v{o0}, v21, v22, vcc")
    e.raw("s_waitcnt lgkmcnt(0)")
    srd(e, sX, 48, XBYTES); srd(e, sDW, 50, 1728)
    for i in range(2):
        e(f"s_mov_b32 m0, {SCR_DW}\ns_nop 0\nbuffer_load_dwordx4 v{vB0}, s[{sDW}:{sDW+3}], 0 offen offset:{1024*i} lds")
    for g in dma_ops(0, True, 24, 25) + sum((dma_ops(t) for t in range(1, 5)), []):
        for l in g: e(l)
    srd(e, sW1, 52, 73728); srd(e, sW2, 54, 73728); srd(e, sGB, 58, 768); srd(e, sDBG, 62, 256); srd(e, sWS, 64, WSBYTES)
    st(e, 'xiss')
    WR = 160
    e(f"v_and_b32 v16, 15, v{vLANE}\nv_mul_u32_u24 v16, 12, v16\nv_bfe_u32 v17, v{vLANE}, 4, 1\nv_lshlrev_b32 v17, 1, v17\nv_add_u32 v17, v17, v{vHALF}\nv_mul_u32_u24 v17, {4*768}, v17\nv_add_u32 v16, v16, v17")
    for i in range(3):
        e(f"s_mul_i32 s{sT0}, s{sWAVE}, 3\ns_add_u32 s{sT0}, s{sT0}, {i}")
        e(f"s_lshr_b32 s{sT0+1}, s{sT0}, 3\ns_mul_i32 s{sT0+1}, s{sT0+1}, {32*768}")
        e(f"s_and_b32 s{sT0+2}, s{sT0}, 1\ns_mul_i32 s{sT0+2}, s{sT0+2}, {16*768}\ns_add_u32 s{sT0+1}, s{sT0+1}, s{sT0+2}")
        e(f"s_bfe_u32 s{sT0+2}, s{sT0}, 0x20001\ns_mul_i32 s{sT0+2}, s{sT0+2}, 192\ns_add_u32 s{sT0+1}, s{sT0+1}, s{sT0+2}")
        for jj in range(4):
            e(f"buffer_load_dwordx3 {R(WR+16*i+4*jj, 3)}, v16, s[{sW1}:{sW1+3}], s{sT0+1} offen offset:{768*jj}")
    st(e, 'wiss')
    e.label("L_lut")
    lut_build(e, True, 208)
    e.raw(f"s_cmp_lg_u32 s{sFLAG}, 0\ns_cbranch_scc1 L_scale")
    e(f"v_and_b32 v17, 3, v{vLANE}\nv_bfe_u32 v18, v{vLANE}, 2, 2\nv_lshl_add_u32 v17, v17, 2, v18\nv_bfe_u32 v18, v{vLANE}, 4, 1")
    e(f"s_and_b32 s{sT0}, s{sWAVE}, 1\ns_lshl_b32 s{sT0}, s{sT0}, 4")
    for dx in range(3):
        e(f"v_add_u32 v19, s{sT0}, v17\nv_add_u32 v19, {dx}, v19")
        e(f"v_bfe_u32 v20, v19, 2, 2\nv_lshlrev_b32 v20, 4, v20\nv_mul_u32_u24 v19, 192, v19\nv_add_u32 v19, v19, v20")
        e(f"v_mul_u32_u24 v20, {ROWL}, v18\nv_add_u32 v{vCB+dx}, v19, v20")
    e(f"v_bfe_u32 v232, v{vLANE}, 2, 1\nv_bfe_u32 v233, v{vLANE}, 3, 1\nv_and_b32 v234, 3, v{vLANE}\nv_lshl_add_u32 v235, v233, 2, v234\nv_lshrrev_b32 v236, 4, v{vLANE}")
    def waddr(dst, dyreg, dxexpr):
        e(f"v_mul_u32_u24 v237, 3, v{dyreg}\nv_add_u32 v237, {dxexpr}, v237\nv_mul_u32_u24 v237, 96, v237\nv_add_u32 v237, v237, v235")
        e(f"v_lshlrev_b32 v237, 1, v237\nv_add_u32 v237, {SCR_DW}, v237\nv_mov_b32 v238, {SCR_DW+1792}")
        e(f"v_cmp_gt_u32 vcc, 3, v{dyreg}\ns_nop 1\nv_cndmask_b32 v{dst}, v238, v237, vcc")
    e(f"v_and_b32 v239, 1, v236\nv_lshlrev_b32 v239, 1, v239\nv_sub_u32 v239, v239, v232")
    waddr(240, 239, f"v{vHALF}")
    e("v_add_u32 v239, 1, v239"); waddr(241, 239, f"v{vHALF}")
    e("v_sub_u32 v239, v236, v232"); waddr(242, 239, "2")
    e(f"v_xor_b32 v237, 1, v234\nv_lshl_or_b32 v237, v237, 2, v234\nv_mul_u32_u24 v{vIDX}, 0x1111, v237")
    e(f"v_subrev_u32 v243, 1, v233\nv_not_b32 v244, v243")
    e(f"v_and_b32 v245, 1, v235\nv_lshlrev_b32 v245, 4, v245\nv_lshrrev_b32 v237, 1, v235")
    for r in range(4):
        e(f"v_cmp_eq_u32 vcc, {r}, v237\ns_nop 1\nv_cndmask_b32 v{246+r}, 0, -1, vcc")
    e.wait(vm=len(e.vm) - 2)
    for cb in range(12):
        e(f"ds_read_u16 v{A1+4*cb}, v240 offset:{16*cb}\nds_read_u16 v{A1+4*cb+2}, v241 offset:{16*cb}\nds_read_u16 v{A2+4*cb}, v242 offset:{16*cb}")
    for j in range(24): e(f"v_mov_b32 v{SUM+j}, 0")
    for cb in range(12):
        a = A1 + 4*cb; b = A2 + 4*cb
        e(f"v_and_b32 v{a+1}, v244, v{a}\nv_and_b32 v{a}, v243, v{a}\nv_and_b32 v{a+3}, v244, v{a+2}\nv_and_b32 v{a+2}, v243, v{a+2}")
        e(f"v_lshlrev_b32 v{b}, v245, v{b}\nv_and_b32 v{b+1}, v247, v{b}\nv_and_b32 v{b+2}, v248, v{b}\nv_and_b32 v{b+3}, v249, v{b}\nv_and_b32 v{b}, v246, v{b}")
    st(e, 'cvA')
    e(f"v_mov_b32 v232, 0\ns_mov_b32 s{sT0}, 0x7fff7fff")
    for i in range(3):
        for jj in range(4):
            for d in range(3):
                e(f"v_and_b32 v233, s{sT0}, v{WR+16*i+4*jj+d}\nv_pk_max_u16 v232, v232, v233")
    e("v_lshrrev_b32 v233, 16, v232\nv_and_b32 v232, 0xffff, v232\nv_max_u32 v232, v232, v233")
    wave_reduce_dpp(e, "v_max_u32", 232)
    e(f"v_readlane_b32 s{sT0}, v232, 63\ns_lshl_b32 s{sT0+1}, s{sWAVE}, 2\ns_add_u32 s{sT0+1}, s{sT0+1}, {SCR_MAX}")
    e(f"s_nop 2\nv_mov_b32 v232, s{sT0}\nv_mov_b32 v233, s{sT0+1}\nds_write_b32 v233, v232")
    e.wait(lgkm=0); e("s_barrier")
    e(f"v_mov_b32 v233, {SCR_MAX}\nds_read_b128 v[236:239], v233\nds_read_b128 v[240:243], v233 offset:16")
    e("v_max_u32 v236, v236, v237\nv_max3_u32 v236, v236, v238, v239\nv_max3_u32 v236, v236, v240, v241\nv_max3_u32 v236, v236, v242, v243")
    e(f"v_readfirstlane_b32 s{sT0}, v236\ns_nop 3\ns_lshr_b32 s{sT0}, s{sT0}, 7\ns_max_u32 s{sT0}, s{sT0}, 25\ns_sub_u32 s{sT0}, s{sT0}, 25")
    e(f"s_sub_u32 s{sT0+1}, {S0}, s{sT0}\ns_cmp_le_u32 s{sT0+1}, 10")
    e.raw("s_cbranch_scc1 L_scale")
    e(f"s_mov_b32 s{sS}, s{sT0}\ns_mov_b32 s{sFLAG}, 1")
    e.raw("s_branch L_lut")
    e.label("L_scale")
    e(f"s_sub_u32 s{sNS}, 0, s{sS}\ns_mov_b32 s{sT0+6}, 0x07060302\ns_mov_b32 s{sT0+7}, 0x05040100")
    lmask = sum(1 << B for B in range(24) if c.cls[B] == 'L')
    for i in range(3):
        e(f"s_mul_i32 s{sT0}, s{sWAVE}, 3\ns_add_u32 s{sT0}, s{sT0}, {i}")
        e(f"s_lshr_b32 s{sT0+1}, s{sT0}, 3\ns_bfe_u32 s{sT0+2}, s{sT0}, 0x20001\ns_mul_i32 s{sT0+5}, s{sT0+2}, 6\ns_mul_i32 s{sT0+2}, s{sT0+2}, 18\ns_add_u32 s{sT0+1}, s{sT0+1}, s{sT0+2}")
        e(f"s_lshr_b32 s{sT0+5}, {lmask:#x}, s{sT0+5}\ns_and_b32 s{sT0+2}, s{sT0}, 1\ns_lshl_b32 s{sT0+2}, s{sT0+2}, 3")
        for el in range(6):
            e(f"s_add_u32 s{sT0+3}, s{sT0+1}, {3*el}\ns_cmp_ge_u32 s{sT0+3}, 56\ns_cselect_b32 s{sT0+4}, 16, 8")
            e(f"s_add_u32 s{sT0+3}, s{sT0+3}, s{sT0+4}\ns_lshl_b32 s{sT0+3}, s{sT0+3}, 10\ns_add_u32 s{sT0+3}, s{sT0+3}, s{sT0+2}")
            kinds = {c.cls[6*cg + el] for cg in range(4)}
            if kinds == {'L'}: ex = f"s{sNS}"
            elif kinds == {'V'}: ex = None
            else:
                e(f"s_bitcmp1_b32 s{sT0+5}, {el}\ns_cselect_b32 s{sT0+4}, s{sNS}, 0"); ex = f"s{sT0+4}"
            tp = 232 + 4*(el % 2)
            for a in range(2):
                r0 = WR + 16*i + 4*(2*a) + el//2; r1 = r0 + 4
                if ex is None:
                    e(f"v_perm_b32 v{tp+a}, v{r1}, v{r0}, s{sT0+6 if el % 2 else sT0+7}")
                else:
                    if el % 2: e(f"v_and_b32 v{tp+2}, 0xffff0000, v{r0}\nv_and_b32 v{tp+3}, 0xffff0000, v{r1}")
                    else: e(f"v_lshlrev_b32 v{tp+2}, 16, v{r0}\nv_lshlrev_b32 v{tp+3}, 16, v{r1}")
                    e(f"v_ldexp_f32 v{tp+2}, v{tp+2}, {ex}\nv_ldexp_f32 v{tp+3}, v{tp+3}, {ex}\nv_cvt_pk_bf16_f32 v{tp+a}, v{tp+2}, v{tp+3}")
            e(f"v_add_u32 v{240+el%2}, s{sT0+3}, v{vB0}\nds_write_b64 v{240+el%2}, {R(tp,2)}")
    e(f"s_lshl_b32 s{sLNO}, s2, 4\ns_add_u32 s{sLNO}, s{sLNO}, s{sWAVE}\ns_mul_i32 s{sLNO}, s{sLNO}, 6144")
    e(f"s_lshr_b32 s{sT0+1}, s{sWAVE}, 1\ns_lshl_b32 s{sT0+1}, s{sT0+1}, 1\ns_add_u32 s{sT0}, s{sY0}, s{sT0+1}\ns_lshl_b32 s{sT0}, s{sT0}, 9\ns_add_u32 s{sT0}, s{sT0}, s{sX0}")
    e(f"s_and_b32 s{sT0+1}, s{sWAVE}, 1\ns_lshl_b32 s{sT0+1}, s{sT0+1}, 4\ns_add_u32 s{sT0}, s{sT0}, s{sT0+1}\ns_mul_i32 s{sTILE}, s{sT0}, 192")
    for s in range(1, 4): e(f"s_add_u32 s{sTILE+s}, s{sTILE}, {8*s*ROWB}")

def ticket(e, phase):
    n = 252; L = f"L_tk{phase}"
    e.raw(f"s_cmp_lg_u32 s{sWAVE}, 7\ns_cbranch_scc1 {L}")
    if phase == 0:
        e(f"s_lshl_b32 s{sT0}, s{sREP}, 2\nv_mov_b32 v{n}, 1\nv_mov_b32 v{vT}, 0\ns_mov_b64 exec, 1")
        e.raw(f"buffer_atomic_add v{n}, v{vT}, s[{sDBG}:{sDBG+3}], s{sT0} offen sc0")
        e("s_mov_b64 exec, -1")
    elif phase == 1:
        e(f"v_readfirstlane_b32 s{sTK}, v{n}\ns_nop 3\ns_cmp_lg_u32 s{sTK}, 0")
        e.raw(f"s_cbranch_scc1 {L}")
        e(f"v_mov_b32 v{n}, 0\nv_mov_b32 v{n+1}, 0\nv_mov_b32 v{n+2}, 0\nv_mul_u32_u24 v{vT}, 12, v{vLANE}")
        e(f"s_mul_i32 s{sT0}, s{sREP}, 1536\ns_add_u32 s{sT0}, s{sT0}, {WS_SUM}\ns_lshl_b32 s{sT0+1}, s{sREP}, 7\ns_add_u32 s{sT0+1}, s{sT0+1}, {WS_CNT}")
        e.raw(f"buffer_store_dwordx3 {R(n,3)}, v{vT}, s[{sWS}:{sWS+3}], s{sT0} offen sc0 sc1\nbuffer_store_dwordx3 {R(n,3)}, v{vT}, s[{sWS}:{sWS+3}], s{sT0} offen offset:768 sc0 sc1")
        e.raw(f"buffer_store_dword v{n}, v{n+1}, s[{sWS}:{sWS+3}], s{sT0+1} offen sc0 sc1")
    else:
        e.raw(f"s_cmp_lg_u32 s{sTK}, 0\ns_cbranch_scc1 {L}")
        e(f"s_lshl_b32 s{sT0}, s{sREP}, 2\nv_mov_b32 v{n}, 1\nv_mov_b32 v{vT}, 0\ns_mov_b64 exec, 1")
        e.raw(f"buffer_atomic_add v{n}, v{vT}, s[{sDBG}:{sDBG+3}], s{sT0} offen offset:64")
        e("s_mov_b64 exec, -1")
    e.label(L)
    e("s_nop 1")

def conv(e, s):
    e(f"s_lshr_b32 s{sT0}, s{sWAVE}, 1\ns_add_u32 s{sT0}, s{sT0}, {(4*s) % 5}\ns_add_u32 s{sT0+1}, s{sT0}, 1")
    for k in range(2):
        e(f"s_cmp_ge_u32 s{sT0+k}, 5\ns_cselect_b32 s{sT0+2}, 5, 0\ns_sub_u32 s{sT0+k}, s{sT0+k}, s{sT0+2}\ns_mul_i32 s{sT0+k}, s{sT0+k}, {PAIRB}")
    e(f"s_sub_u32 s{sT0+1}, s{sT0+1}, s{sT0}\ns_add_u32 s{sT0}, s{sT0}, {RING}")
    e(f"v_mul_lo_u32 v{vT}, v{vHALF}, s{sT0+1}\nv_add_u32 v{vT}, s{sT0}, v{vT}")
    for dx in range(3): e(f"v_add_u32 v{vAD+dx}, v{vT}, v{vCB+dx}")
    sc = Sched()
    order = [(b, a) for b in range(4) for a in range(3)]
    for k, (b, a) in enumerate(order):
        cb = 4*a + b; buf = CBUF + 12*(k % 3); acc = ACC1 + 4*cb
        if a == 0 and b > 0:
            for dx in range(3): sc.add(k - 2.05, f"v_xor_b32 v{vAD+dx}, {16*(b ^ (b-1))}, v{vAD+dx}")
        sc.add(k - 2, f"ds_read_b128 {R(buf+8,4)}, v{vAD+2} offset:{64*a}")
        sc.add(k - 2, f"ds_read_b128 {R(buf,4)}, v{vAD} offset:{64*a}")
        sc.add(k - 2, f"ds_read_b128 {R(buf+4,4)}, v{vAD+1} offset:{64*a}")
        sc.add(k - 0.2, f"v_mfma_f32_16x16x32_bf16 {R(acc,4)}, {R(A2+4*cb,4)}, {R(buf+8,4)}, 0")
        sc.add(k - 0.1, f"v_smfmac_f32_16x16x64_bf16 {R(acc,4)}, {R(A1+4*cb,4)}, {R(buf,8)}, v{vIDX}")
        for i in range(4):
            tt = k + 1.5 + 0.01*i
            if k == 0 and i == 0:
                sc.add(tt, f"v_mov_b32 v{S1}, v{acc}"); sc.add(tt, f"v_mul_f32 v{S2}, v{acc}, v{acc}")
            else:
                sc.add(tt, f"v_add_f32 v{S1}, v{acc+i}, v{S1}"); sc.add(tt, f"v_fmac_f32 v{S2}, v{acc+i}, v{acc+i}")
    m = e.merge; e.merge = 0
    sc.emit(e); e.merge = m

def layernorm(e, LN):
    e(f"v_permlane32_swap_b32 v{S1}, v{S2}\nv_add_f32 v{S1}, v{S1}, v{S2}\nv_mov_b32 v{S2}, v{S1}\nv_permlane32_swap_b32 v{S1}, v{S2}")
    e(f"v_mul_f32 v{S1}, {0x3c2aaaab:#x}, v{S1}\nv_mul_f32 v{S2}, {0x3c2aaaab:#x}, v{S2}\nv_fma_f32 v{S2}, -v{S1}, v{S1}, v{S2}\nv_max_f32 v{S2}, 0, v{S2}")
    e(f"v_add_f32 v{S2}, {0x3727c5ac:#x}, v{S2}\nv_rsq_f32 v{S2}, v{S2}\nv_mul_f32 v{S2}, {K_NEGK:#x}, v{S2}\nv_mul_f32 v{S1}, v{S1}, v{S2}")
    for r in range(48): e(f"v_fma_f32 v{ACC1+r}, v{ACC1+r}, v{S2}, -v{S1}")
    for t3 in range(3):
        for a in range(2):
            for z in range(2):
                cb = 4*t3 + 2*a + z
                for i in range(2): e(f"v_cvt_pk_bf16_f32 v{LN+12*z+4*t3+2*a+i}, v{ACC1+4*cb+2*i}, v{ACC1+4*cb+2*i+1}")
    for k in range(12): e(f"v_permlane16_swap_b32 v{LN+k}, v{LN+12+k}")

def wread(sl, F):
    a = fragA(F); return f"ds_read_b128 {R(sl,4)}, v{vB0 if a < 65536 else vB1} offset:{a & 65535}"

def gemm1(e, c, LN, extra):
    sc = Sched(); nw = 3; lead = 2; f = 0; nT = 0
    order = list(range(24))
    for bi, B in enumerate(order):
        d = POOL + 8*(bi % 8); acc = SUM + B; sl = []
        for t in range(3):
            s_ = W + 4*(f % nw); f += 1; sl.append(s_)
            sc.add(bi + 2*(t - lead)/6 + 0.003, wread(s_, 3*B + t))
            for z in range(2):
                sc.add(bi + (2*t + z)/6, f"v_mfma_f32_16x16x32_bf16 {R(d+4*z,4)}, {R(LN+12*z+4*t,4)}, {R(s_,4)}, {'0' if t == 0 else R(d+4*z,4)}")
        if c.cls[B] == 'L':
            ng = [1,1,2,1,1,2]; r = d
            for k in range(6):
                ts = bi + 1 + (k+1)/6
                for _ in range(ng[k]):
                    sc.add(ts - 0.002, f"v_lshlrev_b32_sdwa v{r}, v{vONE}, v{r} {SDWA1}")
                    sc.add(ts + 0.002, f"ds_read_u16_d16_hi v{r}, v{r}")
                    sc.add(ts + 1.35, f"v_add_f32 v{acc}, v{r}, v{acc}")
                    r += 1
        else:
            n = 1
            while bi + n < 24 and c.cls[order[bi + n]] != 'V': n += 1
            span = min(n, 3) if bi + n >= 24 else n
            tt = T1 + 8*(nT % 2); nT += 1
            stages = [lambda r, t: f"v_fmaak_f32 v{t}, v{r}, v{r}, {K_A:#x}", lambda r, t: f"v_mul_f32 v{t}, v{r}, v{t}", lambda r, t: f"v_exp_f32 v{t}, v{t}",
                      lambda r, t: f"v_add_f32 v{t}, 1.0, v{t}", lambda r, t: f"v_rcp_f32 v{t}, v{t}", lambda r, t: f"v_mul_f32 v{t}, v{r}, v{t}", lambda r, t: f"v_fmac_f32 v{acc}, v{t}, v{t}"]
            wt = [1,1,2,1,2,1,1]; cum = 0
            for hh in range(2):
                for si, fn in enumerate(stages):
                    for k in range(4): sc.add(bi + 1.2 + span*(cum + wt[si]*k/4)/18, fn(d + 4*hh + k, tt + 4*hh + k))
                    cum += wt[si]
    for k, (t, g) in enumerate(extra):
        for i, l in enumerate(g): sc.add(t + 0.004 + 1e-5*i, l)
    emit_prio(sc, e, c.prio1)

def ln_mem(op, tile, base):
    o = []
    for k in range(6):
        o.append([f"s_add_u32 s{sT0+2}, s{sLNO}, {tile*8*6144 + 1024*k}", f"buffer_{op}_dwordx4 {R(base+4*k,4)}, v{vB0}, s[{sWS}:{sWS+3}], s{sT0+2} offen"])
    return o

WR2 = 40; GBR = 88
def w2_loads():
    o = [[f"v_lshrrev_b32 v{vT}, 4, v{vLANE}", f"v_mul_u32_u24 v100, 48, v{vT}", f"v_mul_u32_u24 v{vT}, {24*192}, v{vT}", f"v_and_b32 v101, 15, v{vLANE}", f"v_mul_u32_u24 v101, 12, v101", f"v_add_u32 v101, v101, v{vT}"]]
    for i in range(3):
        pre = [f"s_mul_i32 s{sT0+3}, s{sWAVE}, 3", f"s_add_u32 s{sT0+3}, s{sT0+3}, {i}", f"s_mul_i32 s{sT0+4}, s{sT0+3}, 43", f"s_lshr_b32 s{sT0+4}, s{sT0+4}, 8",
               f"s_mul_i32 s{sT0+4}, s{sT0+4}, 90", f"s_add_u32 s{sT0+3}, s{sT0+3}, s{sT0+4}", f"s_mul_i32 s{sT0+4}, s{sT0+3}, 192", f"s_lshl_b32 s{sT0+3}, s{sT0+3}, 1"]
        for jj in range(4):
            o.append((pre if jj == 0 else []) + [f"buffer_load_dwordx3 {R(WR2+16*i+4*jj,3)}, v101, s[{sW2}:{sW2+3}], s{sT0+4} offen offset:{6*192*jj}",
                     f"buffer_load_ushort v{GBR+4*i+jj}, v100, s[{sGB}:{sGB+3}], s{sT0+3} offen offset:{12*jj}"])
    o.append([f"s_lshl_b32 s{sT0+3}, s{sREP}, 2", f"v_mov_b32 v103, 0", f"buffer_load_dword v102, v103, s[{sDBG}:{sDBG+3}], s{sT0+3} offen offset:64 sc0 sc1"])
    return o

def units(c):
    V = [B for B in range(24) if c.cls[B] == 'V']; L = [B for B in range(24) if c.cls[B] == 'L']
    U = []
    nLL = 12 - len(V); acc = 0
    Lq = list(L); Vq = list(V)
    for u in range(12):
        acc += nLL
        if acc >= 12 or not Vq:
            acc -= 12; U.append((Lq.pop(0), Lq.pop(0)))
        else: U.append((Vq.pop(0), Lq.pop(0)))
    assert not Lq and not Vq
    return U

def sync1(e, c, st):
    for k in range(0, 24, 2): e(f"v_permlane16_swap_b32 v{SUM+k}, v{SUM+k+1}")
    for k in range(0, 24, 2): e(f"v_add_f32 v{SUM+k}, v{SUM+k}, v{SUM+k+1}")
    for k in range(0, 24, 4): e(f"v_permlane32_swap_b32 v{SUM+k}, v{SUM+k+2}")
    for k in range(0, 24, 4): e(f"v_add_f32 v{SUM+k}, v{SUM+k}, v{SUM+k+2}")
    e(f"s_mul_i32 s{sT0}, s{sWAVE}, 1536\ns_add_u32 s{sT0}, s{sT0}, {RED}\nv_lshlrev_b32 v{vT}, 2, v{vLANE}\nv_add_u32 v160, s{sT0}, v{vT}")
    for k in range(6): e(f"ds_write_b32 v160, v{SUM+4*k} offset:{256*k}")
    e(f"s_lshl_b32 s{sT0}, s{sREP}, 2\nv_mov_b32 v161, 0\ns_mov_b32 s{sT0+1}, 0x100000")
    e(f"v_readfirstlane_b32 s{sT0+2}, v102\ns_nop 3\ns_cmp_lg_u32 s{sT0+2}, 0")
    e.raw("s_cbranch_scc1 L_flagged")
    e.label("L_flag")
    e(f"buffer_load_dword v162, v161, s[{sDBG}:{sDBG+3}], s{sT0} offen offset:64 sc0 sc1")
    e(f"v_readfirstlane_b32 s{sT0+2}, v162\ns_sub_u32 s{sT0+1}, s{sT0+1}, 1\ns_cmp_eq_u32 s{sT0+1}, 0")
    e.raw("s_cbranch_scc1 L_flagged")
    e(f"s_cmp_eq_u32 s{sT0+2}, 0")
    e.raw("s_cbranch_scc1 L_flag")
    e.label("L_flagged")
    e.wait(lgkm=0); e("s_barrier"); st(e, 'B1')
    e.raw(f"s_cmp_ge_u32 s{sWAVE}, 6\ns_cbranch_scc1 L_noat")
    e(f"v_lshlrev_b32 v160, 2, v0\nv_add_u32 v161, {RED}, v160")
    for w in range(8): e(f"ds_read_b32 v{164+w}, v161 offset:{1536*w}")
    for w in range(1, 8): e(f"v_add_f32 v164, v164, v{164+w}")
    e(f"s_mul_i32 s{sT0}, s{sREP}, 1536\ns_add_u32 s{sT0}, s{sT0}, {WS_SUM}")
    e.raw(f"buffer_atomic_add_f32 v164, v160, s[{sWS}:{sWS+3}], s{sT0} offen")
    e.label("L_noat")
    lut_build(e, False, 176)
    e.raw(f"s_cmp_ge_u32 s{sWAVE}, 6\ns_cbranch_scc1 L_nocnt\ns_waitcnt vmcnt(0)")
    e(f"s_lshl_b32 s{sT0}, s{sREP}, 7\ns_add_u32 s{sT0}, s{sT0}, {WS_CNT}\nv_mov_b32 v200, 1\nv_mov_b32 v201, 0\ns_mov_b64 exec, 1")
    e.raw(f"buffer_atomic_add v200, v201, s[{sWS}:{sWS+3}], s{sT0} offen")
    e("s_mov_b64 exec, -1")
    e.label("L_nocnt")
    UB = 160
    for i in range(3):
        for jj in range(4):
            e(f"v_lshlrev_b32 v{GBR+4*i+jj}, 16, v{GBR+4*i+jj}")
    for o in range(6):
        for i in range(3):
            for jj in range(4):
                src = WR2 + 16*i + 4*jj + o//2
                t = 200 + (jj & 1)
                e(f"v_and_b32 v{t}, 0xffff0000, v{src}" if o % 2 else f"v_lshlrev_b32 v{t}, 16, v{src}")
                if i == 0 and jj == 0: e(f"v_mul_f32 v{204+o}, v{t}, v{GBR}")
                else: e(f"v_fmac_f32 v{204+o}, v{t}, v{GBR+4*i+jj}")
    for k in range(0, 6, 2): e(f"v_permlane16_swap_b32 v{204+k}, v{205+k}")
    for k in range(0, 6, 2): e(f"v_add_f32 v{204+k}, v{204+k}, v{205+k}")
    e("v_mov_b32 v209, v208\nv_permlane32_swap_b32 v204, v206\nv_permlane32_swap_b32 v208, v209\nv_add_f32 v204, v204, v206\nv_add_f32 v208, v208, v209")
    e(f"v_and_b32 v200, 15, v{vLANE}\nv_mul_u32_u24 v200, 6, v200\nv_lshrrev_b32 v201, 4, v{vLANE}\nv_add_u32 v202, v200, v201\nv_and_b32 v201, 1, v201\nv_add3_u32 v203, v200, v201, 4")
    e(f"s_mul_i32 s{sT0}, s{sWAVE}, 384\ns_add_u32 s{sT0}, s{sT0}, {REDB}\nv_lshl_add_u32 v202, v202, 2, s{sT0}\nv_lshl_add_u32 v203, v203, 2, s{sT0}")
    e("ds_write_b32 v202, v204\nds_write_b32 v203, v208")
    e.wait(lgkm=0); e("s_barrier"); st(e, 'B2')
    e.raw(f"s_cmp_lt_u32 s{sWAVE}, 6\ns_cbranch_scc1 L_nob2")
    e(f"v_subrev_u32 v200, 384, v0\nv_lshlrev_b32 v200, 2, v200\nv_add_u32 v201, {REDB}, v200")
    for w in range(8): e(f"ds_read_b32 v{204+w}, v201 offset:{384*w}")
    for w in range(1, 8): e(f"v_add_f32 v204, v204, v{204+w}")
    e(f"v_add_u32 v200, {B2F}, v200\nds_write_b32 v200, v204")
    e.label("L_nob2")
    e.wait(lgkm=0)
    srd(e, sOUT, sPOUT, XBYTES); srd(e, sG, sPG, 768)
    e(f"v_add_u32 v{vB2}, 0x20000, v{vB0}\nv_lshrrev_b32 v200, 4, v{vLANE}\nv_mul_u32_u24 v200, 192, v200\nv_and_b32 v201, 15, v{vLANE}\nv_mul_u32_u24 v201, 12, v201\nv_add_u32 v{vOP}, v200, v201")
    e(f"v_lshrrev_b32 v200, 4, v{vLANE}\ns_mul_i32 s{sT0}, s{sWAVE}, 3\nv_add_u32 v200, s{sT0}, v200\nv_mul_u32_u24 v202, 43, v200\nv_lshrrev_b32 v202, 8, v202\nv_mul_u32_u24 v202, 90, v202\nv_add_u32 v200, v200, v202")
    e(f"v_mul_u32_u24 v201, 6, v{vLANE}\nv_and_b32 v202, 15, v{vLANE}\nv_mul_u32_u24 v201, 6, v202\nv_add_u32 v200, v200, v201\nv_lshlrev_b32 v200, 1, v200")
    e(f"buffer_load_ushort v100, v200, s[{sG}:{sG+3}], 0 offen")

def sync2(e, c, st):
    U = units(c); pos = {B: (u, H) for u, p in enumerate(U) for H, B in enumerate(p)}
    e.vm = []
    e.raw(f"s_cmp_lg_u32 s{sWAVE}, 0\ns_cbranch_scc1 L_arrived")
    e(f"v_and_b32 v101, {NREP-1}, v{vLANE}\nv_lshlrev_b32 v101, 7, v101\ns_mov_b32 s{sT0}, {WS_CNT}\ns_mov_b32 s{sT0+1}, 0x100000")
    e.label("L_poll")
    e(f"buffer_load_dword v102, v101, s[{sWS}:{sWS+3}], s{sT0} offen sc0 sc1")
    e(f"v_cmp_ne_u32 vcc, {6*256//NREP}, v102\ns_sub_u32 s{sT0+1}, s{sT0+1}, 1\ns_cmp_eq_u32 s{sT0+1}, 0")
    e.raw("s_cbranch_scc1 L_arrived\ns_nop 4\ns_cbranch_vccnz L_poll")
    e.label("L_arrived")
    st(e, 'pre'); e("s_barrier"); st(e, 'B3')
    e(f"s_mul_i32 s{sT0}, s{sWAVE}, 192\ns_add_u32 s{sT0}, s{sT0}, {WS_SUM}\nv_lshlrev_b32 v101, 2, v{vLANE}")
    for r in range(NREP):
        e(f"buffer_load_dword v{102+r}, v101, s[{sWS}:{sWS+3}], s{sT0} offen sc0 sc1\ns_add_u32 s{sT0}, s{sT0}, 1536")
    e(f"v_and_b32 v110, 15, v{vLANE}\nv_mul_u32_u24 v110, 24, v110\nv_add_u32 v110, {B2F}, v110")
    for k in range(3): e(f"ds_read_b64 {R(BIAS+2*k,2)}, v110 offset:{8*k}")
    e.wait(vm=0)
    for r in range(1, NREP): e(f"v_add_f32 v102, v102, v{102+r}")
    e(f"v_mov_b32 v103, {0x358637bd:#x}\nv_fmac_f32 v103, {K_INVK2:#x}, v102\nv_sqrt_f32 v103, v103")
    e(f"v_cmp_gt_u32 vcc, 48, v{vLANE}\ns_nop 1\nv_cndmask_b32 v103, 0, v103, vcc\nv_mov_b32 v104, v103")
    wave_reduce_dpp(e, "v_add_f32", 104)
    e(f"v_readlane_b32 s{sT0}, v104, 63\ns_lshl_b32 s{sT0+1}, s{sWAVE}, 2\ns_add_u32 s{sT0+1}, s{sT0+1}, {MEANR}\ns_nop 2\nv_mov_b32 v104, s{sT0}\nv_mov_b32 v105, s{sT0+1}\nds_write_b32 v105, v104")
    e.wait(lgkm=0); e("s_barrier")
    e(f"v_mov_b32 v105, {MEANR}\nds_read_b128 v[16:19], v105\nds_read_b128 v[20:23], v105 offset:16")
    for r in range(1, 8): e(f"v_add_f32 v16, v16, v{16+r}")
    e(f"v_mov_b32 v104, {0x358637bd:#x}\nv_fmac_f32 v104, {0x3b2aaaab:#x}, v16\nv_rcp_f32 v104, v104\nv_lshlrev_b32 v100, 16, v100\nv_mul_f32 v103, v103, v104")
    e(f"v_fma_f32 v103, v103, v100, 1.0\nv_mul_f32 v103, {K_NINVK:#x}, v103")
    e(f"v_lshrrev_b32 v104, 4, v{vLANE}\nv_lshlrev_b32 v104, 4, v104")
    for i in range(3):
        for jj in range(4): e(f"ds_bpermute_b32 v{16+4*i+jj}, v104, v103 offset:{64*i+4*jj}")
    e.wait(lgkm=0); e("s_barrier")
    lo = sum((pos[B][0]*2 + pos[B][1]) << (5*(B % 6)) for B in range(6))
    tabs = [sum((pos[6*g+k][0]*2 + pos[6*g+k][1]) << (5*k) for k in range(6)) for g in range(4)]
    for i in range(3):
        e(f"s_mul_i32 s{sT0}, s{sWAVE}, 3\ns_add_u32 s{sT0}, s{sT0}, {i}\ns_mul_i32 s{sT0+1}, s{sT0}, 43\ns_lshr_b32 s{sT0+1}, s{sT0+1}, 8\ns_mul_i32 s{sT0+2}, s{sT0+1}, 6\ns_sub_u32 s{sT0}, s{sT0}, s{sT0+2}\ns_mul_i32 s{sT0}, s{sT0}, 5")
        e(f"s_mov_b32 s{sT0+2}, {tabs[0]:#x}")
        for g in range(1, 4): e(f"s_cmp_eq_u32 s{sT0+1}, {g}\ns_cselect_b32 s{sT0+2}, {tabs[g]:#x}, s{sT0+2}")
        e(f"s_lshr_b32 s{sT0+2}, s{sT0+2}, s{sT0}\ns_and_b32 s{sT0}, s{sT0+2}, 1\ns_lshl_b32 s{sT0}, s{sT0}, 3\ns_bfe_u32 s{sT0+2}, s{sT0+2}, 0x40001\ns_mul_i32 s{sT0+2}, s{sT0+2}, 6144\ns_add_u32 s{sT0}, s{sT0}, s{sT0+2}\ns_add_u32 s{sT0}, s{sT0}, {W2L}")
        e(f"v_add_u32 v104, s{sT0}, v{vB0}")
        for o in range(6):
            tp = 96 + 2*(o % 2)
            for a in range(2):
                for z in range(2):
                    src = WR2 + 16*i + 4*(2*a+z) + o//2
                    e(f"v_and_b32 v{100+z}, 0xffff0000, v{src}" if o % 2 else f"v_lshlrev_b32 v{100+z}, 16, v{src}")
                for z in range(2): e(f"v_mul_f32 v{100+z}, v{100+z}, v{16+4*i+2*a+z}")
                e(f"v_cvt_pk_bf16_f32 v{tp+a}, v100, v101")
            e(f"ds_write_b64 v104, {R(tp,2)} offset:{1024*o}")
    e.wait(lgkm=0); e("s_barrier"); st(e, 'B6')

class Pass2:
    def __init__(self, c): self.c = c; self.U = units(c); self.f = 0; self.nT = 0; self.nw = 3; self.lead = 2
    NS = 48.0; NQ = 24.0
    def frag(self, sc, tm, text_fn, tmin):
        sl = W + 4*(self.f % self.nw); self.f += 1
        sc.add(max(tm - self.lead*4/self.NS + 0.0004, tmin), text_fn(sl)); return sl
    def G1(self, sc, t0, j, tmin=-99):
        for H in range(2):
            for t in range(3):
                tm = t0 + 4*(3*H + t)/self.NS; sl = self.frag(sc, tm, lambda s: wread(s, 3*self.U[j][H] + t), tmin)
                for xz in range(4):
                    d = D + 32*(j % 2) + 8*xz + 4*H
                    sc.add(tm + xz/self.NS, f"v_mfma_f32_16x16x32_bf16 {R(d,4)}, {R(sl,4)}, {R(LN2+12*xz+4*t,4)}, {'0' if t == 0 else R(d,4)}")
    def G2(self, sc, t0, j, tmin=-99):
        for o in range(6):
            a = W2L + 6144*j + 1024*o
            tm = t0 + 4*o/self.NS; sl = self.frag(sc, tm, lambda s: f"ds_read_b128 {R(s,4)}, v{(vB0, vB1, vB2)[a >> 16]} offset:{a & 65535}", tmin)
            ct = CT[o % 2]
            if j == 0:
                for i in range(4): sc.add(max(tm - 3.5/self.NS, tmin), f"v_mov_b32 v{ct+i}, v{BIAS+o}")
            for xz in range(4):
                d = ACC + 24*xz + 4*o
                sc.add(tm + xz/self.NS, f"v_mfma_f32_16x16x32_bf16 {R(d,4)}, {R(D+32*(j%2)+8*xz,4)}, {R(sl,4)}, {R(ct,4) if j == 0 else R(d,4)}")
    def GELU(self, sc, t0, j):
        NQ, NS = self.NQ, self.NS
        for q in range(4):
            d = D + 32*(j % 2) + 8*q
            tq = t0 + (0.5 + (NQ - 8.0)*q/3)/NQ
            Lp = [p for p in range(4) if self.c.cls[self.U[j][p >> 1]] == 'L']; Vp = [p for p in range(4) if p not in Lp]
            for k, p in enumerate(Lp):
                ts = round((tq + (k + 0.5)/NQ)*NS)/NS
                for z in range(2):
                    r = d + 2*p + z
                    sc.add(ts - 0.002, f"v_lshlrev_b32_sdwa v{r}, v{vONE}, v{r} {SDWA1}")
                    sc.add(ts + 0.002, f"ds_read_u16_d16{'_hi' if z else ''} v{r}, v{r}")
            els = [(d + 2*p + z) for p in Vp for z in range(2)]
            tr = []
            for r in els: tr.append(T2 + self.nT % 8); self.nT += 1
            stages = [lambda r, t: f"v_fmaak_f32 v{t}, v{r}, v{r}, {K_A:#x}", lambda r, t: f"v_mul_f32 v{t}, v{r}, v{t}", lambda r, t: f"v_exp_f32 v{t}, v{t}",
                      lambda r, t: f"v_add_f32 v{t}, 1.0, v{t}", lambda r, t: f"v_rcp_f32 v{t}, v{t}", lambda r, t: f"v_mul_f32 v{t}, v{r}, v{t}"]
            for si, f in enumerate(stages):
                for k, (r, t) in enumerate(zip(els, tr)): sc.add(tq + (0.1 + si + 0.6*k/max(len(els),1))/NQ, f(r, t))
            for k, p in enumerate(Vp): sc.add(tq + (6.3 + 0.1*k)/NQ, f"v_cvt_pk_bf16_f32 v{d+p}, v{tr[2*k]}, v{tr[2*k+1]}")
            for k, p in enumerate(Lp): sc.add(tq + 7.2/NQ + 0.001*k, f"v_or_b32 v{d+p}, v{d+2*p}, v{d+2*p+1}")
    def rowbase(self, sc, t, tiles, xz, sreg):
        sc.add(t, f"s_add_u32 s{sreg}, s{sTILE+tiles[xz >> 1]}, {(xz & 1)*ROWB}")
    def resid(self, sc, b, tiles, k):
        xz, r = k >> 2, k & 3; tmp = TMP + 4*(k % 2); j = 2 + k//2
        tl = b + j - 0.29 + 0.2*(k % 2); ta = b + j + 0.56 + 0.2*(k % 2)
        self.rowbase(sc, tl, tiles, xz, sT0 + k % 2)
        sc.add(tl, f"buffer_load_dwordx3 {R(tmp,3)}, v{vOP}, s[{sX}:{sX+3}], s{sT0 + k % 2} offen offset:{768*r}")
        for o in range(6):
            a = ACC + 24*xz + 4*o + r; tt = ta + 0.025*o
            sc.add(tt, f"v_and_b32 v{tmp+3}, 0xffff0000, v{tmp+o//2}" if o % 2 else f"v_lshlrev_b32 v{tmp+3}, 16, v{tmp+o//2}")
            sc.add(tt + 0.01, f"v_add_f32 v{a}, v{tmp+3}, v{a}")
    def epilogue(self, sc, t0, tiles, span):
        for k in range(16):
            xz, r = k >> 2, k & 3; tmp = TMP + 4*(k % 2); tm = t0 + span*k/16
            for P in range(3): sc.add(tm, f"v_cvt_pk_bf16_f32 v{tmp+P}, v{ACC+24*xz+8*P+r}, v{ACC+24*xz+8*P+4+r}")
            self.rowbase(sc, tm, tiles, xz, sT0)
            sc.add(tm, f"buffer_store_dwordx3 {R(tmp,3)}, v{vOP}, s[{sOUT}:{sOUT+3}], s{sT0} offen offset:{768*r}{self.c.st_mod}")
    def pre(self, e):
        sc = Sched()
        self.G1(sc, -0.5, 0); self.G1(sc, 0.5, 1); self.GELU(sc, 0, 0); self.GELU(sc, 1, 1)
        emit_prio(sc, e, self.c.prio2)
    def main(self, e, st):
        sc = Sched()
        for pair in range(2):
            b = 13*pair; tiles = (3, 2) if pair == 0 else (0, 1)
            if pair == 1:
                self.G1(sc, b - 0.5, 0)
                self.epilogue(sc, b - 0.45, (3, 2), 1.4)
                self.G1(sc, b + 0.5, 1)
            for j in range(12):
                if j in (2, 6, 11): st(e, f'p{pair}j{j}', sc, b + j)
                if pair == 1 or j >= 2: self.GELU(sc, b + j, j)
                if j == 10 and pair == 0:
                    for k, g in enumerate(ln_mem("load", 0, LN2) + ln_mem("load", 1, LN2+24)):
                        for l in g: sc.add(b + 11.003 + 0.04*k, l)
                self.G2(sc, b + j + 1, j, tmin=0.9)
                for k in (2*j - 2, 2*j - 1):
                    if 0 <= k < 16: self.resid(sc, b, tiles, k)
                if j + 2 < 12: self.G1(sc, b + j + 1.5, j + 2)
        st(e, 'epi', sc, 25.5)
        self.epilogue(sc, 25.52, (0, 1), 0.3)
        emit_prio(sc, e, self.c.prio2)

def kernel(name, c):
    e = Emit(); e.merge = 0
    st = Stamps(c.stamp)
    st(e, 'rt0', real=True); st(e, 'entry')
    prologue(e, c, st)
    for s in range(4):
        e.wait(lgkm=0, vm=0); e("s_barrier")
        if s in (0, 3): st(e, f'go{s}')
        if s < 3: ticket(e, s)
        conv(e, s)
        e("s_barrier")
        LN = LNA if s < 3 else LN2
        layernorm(e, LN)
        extra = []
        if s < 3:
            g = sum((dma_ops(t) for t in range(4*s+5, 4*s+9)), [])
            extra += [(0.5 + 1.5*k, x) for k, x in enumerate(g)]
        if s < 2: extra += [(13.0 + 1.5*k, x) for k, x in enumerate(ln_mem("store", s, LN))]
        if s == 3: extra += [(1.0 + 1.5*k, x) for k, x in enumerate(w2_loads())]
        if s == 0: st(e, 'ln0')
        e.merge = c.merge
        gemm1(e, c, LN, extra)
        e.merge = 0
        if s in (0, 3): st(e, f'gemm{s}')
    sync1(e, c, st)
    p = Pass2(c)
    e.merge = c.merge
    p.pre(e)
    e.merge = 0
    sync2(e, c, st)
    e.merge = c.merge
    p.main(e, st)
    st(e, 'end'); st(e, 'rt1', real=True); st.flush(e, sWS, sWAVE, 0)
    e.label("L_end")
    e.raw("s_endpgm")
    return khead(name) + e.text() + "\n" + kdesc(name), st.names

if __name__ == '__main__':
    import sys
    HEADER = open('standalone__modern_conv_block_slak__vision.s.ref').read().split('; Override launch')[0]
    out = sys.argv[1] if len(sys.argv) > 1 else 'standalone__modern_conv_block_slak__vision.s'
    c = Cfg()
    for k, v in eval('dict(' + (sys.argv[2] if len(sys.argv) > 2 else '') + ')').items(): setattr(c, k, v)
    body, names = kernel('standalone__modern_conv_block_slak__vision_kernel', c)
    s = HEADER + "; @launch grid=(256,1,1) block=(512,1,1) lds=163840\n" + '.amdgcn_target "amdgcn-amd-amdhsa--gfx950"\n.text\n' + body
    if c.stamp: s += f'; STAMPS {names!r}\n'
    open(out, 'w').write(s)
```

```python
XBYTES = 50331648
ROWB = 98304
WSBYTES = 268435456
WS_LN = 0
WS_W1B = 50331648
WS_W2R = WS_W1B + 73728
WS_LUT = WS_W2R + 73728
WS_B2 = WS_LUT + 16384
WS_SUM = WS_B2 + 512
import os
NREP = int(os.environ.get("NREP", "8"))
K_A = 0x409d30fc
K_NEGK = 0xbeeff558
K_NINVK = 0xc0088e99
K_INVK2 = 0x4091afa4
OOB = 0x80000000
SDWA1 = "dst_sel:DWORD dst_unused:UNUSED_PAD src0_sel:DWORD src1_sel:WORD_1"
def srd(e, s, ptr, size):
    e(f"s_mov_b32 s{s}, s{ptr}\ns_and_b32 s{s+1}, s{ptr+1}, 0xffff\ns_mov_b32 s{s+2}, {size}\ns_mov_b32 s{s+3}, 0x20000")
def R(a, n): return f"v[{a}:{a+n-1}]"
def kdesc(name, nv=256, ns=102):
    return f""".section .rodata,"a"
.p2align 6
.amdhsa_kernel {name}
  .amdhsa_next_free_vgpr {nv}
  .amdhsa_next_free_sgpr {ns}
  .amdhsa_accum_offset {nv}
  .amdhsa_group_segment_fixed_size 0
  .amdhsa_kernarg_size 72
  .amdhsa_user_sgpr_count 2
  .amdhsa_user_sgpr_kernarg_segment_ptr 1
  .amdhsa_system_sgpr_workgroup_id_x 1
  .amdhsa_float_denorm_mode_32 3
.end_amdhsa_kernel
.text
"""
def khead(name):
    return f""".globl {name}
.p2align 8
.type {name},@function
{name}:
"""
def gelu_y(e, y, x, t):
    e(f"v_fmaak_f32 v{t}, v{x}, v{x}, {K_A:#x}\nv_mul_f32 v{t}, v{x}, v{t}\nv_exp_f32 v{t}, v{t}\nv_add_f32 v{t}, 1.0, v{t}\nv_rcp_f32 v{t}, v{t}\nv_mul_f32 v{y}, v{x}, v{t}")
def wave_reduce_dpp(e, op, v, ident_ok=True):
    for c in ("row_shr:1", "row_shr:2", "row_shr:4", "row_shr:8"):
        e(f"{op}_dpp v{v}, v{v}, v{v} {c} row_mask:0xf bank_mask:0xf")
    e(f"{op}_dpp v{v}, v{v}, v{v} row_bcast:15 row_mask:0xa bank_mask:0xf")
    e(f"{op}_dpp v{v}, v{v}, v{v} row_bcast:31 row_mask:0xc bank_mask:0xf")

WS_STAMP = 64 << 20
class Stamps:
    def __init__(self, on): self.on = on; self.names = []; self.only = None if on is True else on
    def __call__(self, e, name, sc=None, t=None, real=False):
        if not self.on: return
        if self.only and name not in self.only.split() + ['rt0', 'rt1', 'entry', 'end']: return
        k = len(self.names); self.names.append(name); assert k < 17, name
        txt = f"s_{'memrealtime' if real else 'memtime'} s[{68+2*k}:{69+2*k}]"
        if sc is not None: sc.add(t, txt)
        else: e.raw(txt)
    def flush_dbg(self, e, sdbg, swave, wg):
        e.raw(f"s_waitcnt lgkmcnt(0)\ns_cmp_lg_u32 s2, {wg}\ns_cbranch_scc1 L_end\ns_cmp_lg_u32 s{swave}, 0\ns_cbranch_scc1 L_end")
        n = len(self.names)
        for k in range(2, n):
            e.raw(f"s_sub_u32 s{68+2*k}, s{68+2*k}, s{68 if k == n-1 else 70}\nv_writelane_b32 v255, s{68+2*k}, {k-2}")
        e.raw(f"v_lshlrev_b32 v254, 2, v1\ns_mov_b64 exec, 0xff\nbuffer_store_dword v255, v254, s[{sdbg}:{sdbg+3}], 0 offen offset:32\ns_mov_b64 exec, -1")
    def flush(self, e, sws, swave, which):
        if not self.on: return
        e.raw("s_waitcnt lgkmcnt(0)")
        e.raw(f"s_lshl_b32 s66, s2, 3\ns_add_u32 s66, s66, s{swave}\ns_lshl_b32 s66, s66, 7\ns_add_u32 s66, s66, {WS_STAMP + which*(1<<20)}")
        for k in range(len(self.names)): e.raw(f"v_writelane_b32 v255, s{68+2*k}, {k}")
        e.raw(f"v_lshlrev_b32 v254, 2, v1\ns_mov_b64 exec, 0xffffffff\nbuffer_store_dword v255, v254, s[{sws}:{sws+3}], s66 offen\ns_mov_b64 exec, -1")
```

```python
from asm import *
from common import *
RING = 90112; PAIRB = 13312; ROWL = 6656
SCR = RING + 5 * PAIRB
SCR_DW = SCR; SCR_MAX = SCR + 2048; SCR_DUMMY = SCR + 3072
W2L = RING
RED = RING; REDB = RING + 12288; B2F = SCR - 2048; MEANR = SCR - 1024
WS_SUM = 0x3000000; WS_CNT = WS_SUM + NREP * 1536
S0 = 101
def fragA(F): return 8192 + 1024 * F if F < 56 else 73728 + 1024 * (F - 56)
vLANE = 1; vB0 = 2; vB1 = 3; vOFA = 4; vOFB = 5; vONE = 6; vIDX = 7; vCB = 8; vAD = 11; vHALF = 14; vT = 15
SUM = 16; A1 = 40; A2 = 88; LNA = 136
ACC1 = 160; CBUF = 208; S1, S2 = 244, 245
POOL = 160; T1 = 224; W = 240
vB2 = 4; vOP = 5; BIAS = 8
ACC = 16; LN2 = 112; D = 160; T2 = 224; TMP = 232; CT = (252, 232)
sX = 4; sWS = 8; sW1 = 12; sDW = 16; sW2 = 20; sGB = 24; sDBG = 28; sOUT = 12; sG = 16
sWAVE = 32; sX0 = 33; sY0 = 34; sS = 35; sNS = 36; sDMA = 37; sLNO = 38; sMB = 39; sMA = 40; sREP = 41; sTK = 42; sFLAG = 43; sT0 = 44
sPG = 56; sPOUT = 60
sTILE = 52

def emit_prio(sc, e, n):
    if not n: return sc.emit(e)
    order = sorted(sc.ops, key=lambda o: (o[0], o[1])); sc.check(order)
    m = 0; k = 0
    e("s_setprio 3")
    for (_, _, text) in order:
        e(text)
        if text.startswith('v_mfma'):
            m += 1
            if m % n == 0: k += 1; e(f"s_setprio {3 - k % 4}")
    e("s_setprio 0"); sc.ops = []

class Cfg:
    prio1 = 12; prio2 = 12
    cls = "LLVLLV" * 4
    merge = 12
    prio = 0
    stamp = False
    st_mod = ""
    remap = False
    dbg = None

def dma_ops(t, first=False, offA=vOFA, offB=vOFB):
    slot = (t % 5) * PAIRB + RING
    so = "0" if first else f"s{sT0}"
    pre = [] if first else [f"s_add_u32 s{sT0}, s{sDMA}, {2*t*ROWB}"]
    ga = pre + [f"s_add_u32 m0, s{sMA}, {slot}", "s_nop 0", f"buffer_load_dwordx4 v{offA}, s[{sX}:{sX+3}], {so} offen lds"]
    gb = pre + [f"s_add_u32 s{sT0+1}, s{sMB}, {slot}", f"s_cmp_lt_u32 s{sWAVE}, 5", f"s_cselect_b32 m0, s{sT0+1}, {SCR_DUMMY}", "s_nop 0",
                f"buffer_load_dwordx4 v{offB}, s[{sX}:{sX+3}], {so} offen lds"]
    return [ga, gb]

def lut_build(e, square, base):
    b = base
    e(f"v_lshrrev_b32 v{b}, 8, v0\nv_and_b32 v{b+1}, 255, v0\nv_lshlrev_b32 v{b+2}, 31, v{b}\nv_lshl_or_b32 v{b+2}, v{b+1}, 20, v{b+2}\nv_or_b32 v{b+2}, 0x8000, v{b+2}")
    e(f"v_lshlrev_b32 v{b}, 16, v{b}\nv_lshl_or_b32 v{b}, v{b+1}, 5, v{b}")
    X = b + 4; Y = b + 8; O = b + 12
    for q in range(0, 16, 4):
        for z in range(4): e(f"v_add_u32 v{X+z}, {(q+z)<<16:#x}, v{b+2}")
        for z in range(4): e(f"v_ldexp_f32 v{X+z}, v{X+z}, s{sS}")
        for z in range(4): e(f"v_fmaak_f32 v{Y+z}, v{X+z}, v{X+z}, {K_A:#x}")
        for z in range(4): e(f"v_mul_f32 v{Y+z}, v{X+z}, v{Y+z}")
        for z in range(4): e(f"v_exp_f32 v{Y+z}, v{Y+z}")
        for z in range(4): e(f"v_add_f32 v{Y+z}, 1.0, v{Y+z}")
        for z in range(4): e(f"v_rcp_f32 v{Y+z}, v{Y+z}")
        for z in range(4): e(f"v_mul_f32 v{Y+z}, v{X+z}, v{Y+z}")
        if square:
            for z in range(4): e(f"v_mul_f32 v{Y+z}, v{Y+z}, v{Y+z}")
        e(f"v_cvt_pk_bf16_f32 v{O+q//2}, v{Y}, v{Y+1}\nv_cvt_pk_bf16_f32 v{O+1+q//2}, v{Y+2}, v{Y+3}")
    e(f"ds_write_b128 v{b}, {R(O,4)}\nds_write_b128 v{b}, {R(O+4,4)} offset:16")

def prologue(e, c, st):
    e("s_cmp_ge_u32 s2, 256"); e.raw("s_cbranch_scc1 L_end")
    e("s_load_dwordx16 s[48:63], s[0:1], 0\ns_load_dwordx2 s[64:65], s[0:1], 64")
    e(f"v_and_b32 v{vLANE}, 63, v0\nv_lshrrev_b32 v{vT}, 6, v0\nv_lshlrev_b32 v{vB0}, 4, v{vLANE}")
    e(f"v_readfirstlane_b32 s{sWAVE}, v{vT}")
    e(f"v_add_u32 v{vB1}, 0x10000, v{vB0}\nv_mov_b32 v{vONE}, 1\nv_lshrrev_b32 v{vHALF}, 5, v{vLANE}")
    if c.remap:
        e(f"s_and_b32 s{sT0}, s2, 7\ns_lshl_b32 s{sT0}, s{sT0}, 5\ns_lshr_b32 s{sT0+1}, s2, 3\ns_add_u32 s3, s{sT0}, s{sT0+1}")
    else: e("s_mov_b32 s3, s2")
    e(f"s_and_b32 s{sX0}, s3, 15\ns_lshl_b32 s{sX0}, s{sX0}, 5\ns_lshr_b32 s{sY0}, s3, 4\ns_lshl_b32 s{sY0}, s{sY0}, 5")
    e(f"s_and_b32 s{sREP}, s2, {NREP-1}\ns_mov_b32 s{sS}, {S0}\ns_mov_b32 s{sFLAG}, 0")
    e(f"s_lshl_b32 s{sMA}, s{sWAVE}, 10\ns_add_u32 s{sMB}, s{sMA}, 8192")
    e(f"s_lshl_b32 s{sT0}, s{sY0}, 9\ns_add_u32 s{sT0}, s{sT0}, s{sX0}\ns_sub_u32 s{sT0}, s{sT0}, 513\ns_mul_i32 s{sDMA}, s{sT0}, 192")
    for (off, add, o0) in ((vOFA, 0, 24), (vOFB, 512, 25)):
        e(f"s_lshl_b32 s{sT0}, s{sWAVE}, 6\ns_add_u32 s{sT0}, s{sT0}, {add}")
        e(f"v_add_u32 v17, s{sT0}, v{vLANE}")
        e(f"v_cmp_le_u32 vcc, 416, v17\ns_nop 1\nv_cndmask_b32 v18, 0, 1, vcc")
        e(f"v_mul_u32_u24 v19, 416, v18\nv_sub_u32 v19, v17, v19")
        e(f"v_mul_u32_u24 v20, 5462, v19\nv_lshrrev_b32 v20, 16, v20")
        e(f"v_mul_u32_u24 v21, 12, v20\nv_sub_u32 v21, v19, v21")
        e(f"v_bfe_u32 v22, v20, 2, 2\nv_xor_b32 v21, v21, v22")
        e(f"v_lshl_add_u32 v22, v18, 9, v20\nv_mul_u32_u24 v22, 192, v22\nv_lshl_add_u32 v22, v21, 4, v22")
        e(f"v_add_u32 v23, s{sX0}, v20\nv_subrev_u32 v23, 1, v23\nv_mov_b32 v21, {OOB:#x}")
        e(f"v_cmp_gt_u32 vcc, 512, v23\nv_cmp_gt_u32 s[{sT0}:{sT0+1}], 34, v20\ns_and_b64 vcc, vcc, s[{sT0}:{sT0+1}]")
        e(f"v_cmp_gt_u32 s[{sT0}:{sT0+1}], v17, v{vONE}\nv_mov_b32 v26, 832\nv_cmp_gt_u32 s[{sT0}:{sT0+1}], v26, v17\ns_and_b64 vcc, vcc, s[{sT0}:{sT0+1}]\ns_nop 1\nv_cndmask_b32 v{off}, v21, v22, vcc")
        e(f"v_add_u32 v22, s{sDMA}, v22\nv_add_u32 v23, s{sY0}, v18\nv_cmp_lt_u32 s[{sT0}:{sT0+1}], 0, v23\ns_and_b64 vcc, vcc, s[{sT0}:{sT0+1}]\ns_nop 1\nv_cndmask_b32 v{o0}, v21, v22, vcc")
    e.raw("s_waitcnt lgkmcnt(0)")
    srd(e, sX, 48, XBYTES); srd(e, sDW, 50, 1728)
    for i in range(2):
        e(f"s_mov_b32 m0, {SCR_DW}\ns_nop 0\nbuffer_load_dwordx4 v{vB0}, s[{sDW}:{sDW+3}], 0 offen offset:{1024*i} lds")
    for g in dma_ops(0, True, 24, 25) + sum((dma_ops(t) for t in range(1, 5)), []):
        for l in g: e(l)
    srd(e, sW1, 52, 73728); srd(e, sW2, 54, 73728); srd(e, sGB, 58, 768); srd(e, sDBG, 62, 256); srd(e, sWS, 64, WSBYTES)
    st(e, 'xiss')
    WR = 160
    e(f"v_and_b32 v16, 15, v{vLANE}\nv_mul_u32_u24 v16, 12, v16\nv_bfe_u32 v17, v{vLANE}, 4, 1\nv_lshlrev_b32 v17, 1, v17\nv_add_u32 v17, v17, v{vHALF}\nv_mul_u32_u24 v17, {4*768}, v17\nv_add_u32 v16, v16, v17")
    for i in range(3):
        e(f"s_mul_i32 s{sT0}, s{sWAVE}, 3\ns_add_u32 s{sT0}, s{sT0}, {i}")
        e(f"s_lshr_b32 s{sT0+1}, s{sT0}, 3\ns_mul_i32 s{sT0+1}, s{sT0+1}, {32*768}")
        e(f"s_and_b32 s{sT0+2}, s{sT0}, 1\ns_mul_i32 s{sT0+2}, s{sT0+2}, {16*768}\ns_add_u32 s{sT0+1}, s{sT0+1}, s{sT0+2}")
        e(f"s_bfe_u32 s{sT0+2}, s{sT0}, 0x20001\ns_mul_i32 s{sT0+2}, s{sT0+2}, 192\ns_add_u32 s{sT0+1}, s{sT0+1}, s{sT0+2}")
        for jj in range(4):
            e(f"buffer_load_dwordx3 {R(WR+16*i+4*jj, 3)}, v16, s[{sW1}:{sW1+3}], s{sT0+1} offen offset:{768*jj}")
    st(e, 'wiss')
    e.label("L_lut")
    lut_build(e, True, 208)
    e.raw(f"s_cmp_lg_u32 s{sFLAG}, 0\ns_cbranch_scc1 L_scale")
    e(f"v_and_b32 v17, 3, v{vLANE}\nv_bfe_u32 v18, v{vLANE}, 2, 2\nv_lshl_add_u32 v17, v17, 2, v18\nv_bfe_u32 v18, v{vLANE}, 4, 1")
    e(f"s_and_b32 s{sT0}, s{sWAVE}, 1\ns_lshl_b32 s{sT0}, s{sT0}, 4")
    for dx in range(3):
        e(f"v_add_u32 v19, s{sT0}, v17\nv_add_u32 v19, {dx}, v19")
        e(f"v_bfe_u32 v20, v19, 2, 2\nv_lshlrev_b32 v20, 4, v20\nv_mul_u32_u24 v19, 192, v19\nv_add_u32 v19, v19, v20")
        e(f"v_mul_u32_u24 v20, {ROWL}, v18\nv_add_u32 v{vCB+dx}, v19, v20")
    e(f"v_bfe_u32 v232, v{vLANE}, 2, 1\nv_bfe_u32 v233, v{vLANE}, 3, 1\nv_and_b32 v234, 3, v{vLANE}\nv_lshl_add_u32 v235, v233, 2, v234\nv_lshrrev_b32 v236, 4, v{vLANE}")
    def waddr(dst, dyreg, dxexpr):
        e(f"v_mul_u32_u24 v237, 3, v{dyreg}\nv_add_u32 v237, {dxexpr}, v237\nv_mul_u32_u24 v237, 96, v237\nv_add_u32 v237, v237, v235")
        e(f"v_lshlrev_b32 v237, 1, v237\nv_add_u32 v237, {SCR_DW}, v237\nv_mov_b32 v238, {SCR_DW+1792}")
        e(f"v_cmp_gt_u32 vcc, 3, v{dyreg}\ns_nop 1\nv_cndmask_b32 v{dst}, v238, v237, vcc")
    e(f"v_and_b32 v239, 1, v236\nv_lshlrev_b32 v239, 1, v239\nv_sub_u32 v239, v239, v232")
    waddr(240, 239, f"v{vHALF}")
    e("v_add_u32 v239, 1, v239"); waddr(241, 239, f"v{vHALF}")
    e("v_sub_u32 v239, v236, v232"); waddr(242, 239, "2")
    e(f"v_xor_b32 v237, 1, v234\nv_lshl_or_b32 v237, v237, 2, v234\nv_mul_u32_u24 v{vIDX}, 0x1111, v237")
    e(f"v_subrev_u32 v243, 1, v233\nv_not_b32 v244, v243")
    e(f"v_and_b32 v245, 1, v235\nv_lshlrev_b32 v245, 4, v245\nv_lshrrev_b32 v237, 1, v235")
    for r in range(4):
        e(f"v_cmp_eq_u32 vcc, {r}, v237\ns_nop 1\nv_cndmask_b32 v{246+r}, 0, -1, vcc")
    e.wait(vm=len(e.vm) - 2)
    for cb in range(12):
        e(f"ds_read_u16 v{A1+4*cb}, v240 offset:{16*cb}\nds_read_u16 v{A1+4*cb+2}, v241 offset:{16*cb}\nds_read_u16 v{A2+4*cb}, v242 offset:{16*cb}")
    for j in range(24): e(f"v_mov_b32 v{SUM+j}, 0")
    for cb in range(12):
        a = A1 + 4*cb; b = A2 + 4*cb
        e(f"v_and_b32 v{a+1}, v244, v{a}\nv_and_b32 v{a}, v243, v{a}\nv_and_b32 v{a+3}, v244, v{a+2}\nv_and_b32 v{a+2}, v243, v{a+2}")
        e(f"v_lshlrev_b32 v{b}, v245, v{b}\nv_and_b32 v{b+1}, v247, v{b}\nv_and_b32 v{b+2}, v248, v{b}\nv_and_b32 v{b+3}, v249, v{b}\nv_and_b32 v{b}, v246, v{b}")
    st(e, 'cvA')
    e(f"v_mov_b32 v232, 0\ns_mov_b32 s{sT0}, 0x7fff7fff")
    for i in range(3):
        for jj in range(4):
            for d in range(3):
                e(f"v_and_b32 v233, s{sT0}, v{WR+16*i+4*jj+d}\nv_pk_max_u16 v232, v232, v233")
    e("v_lshrrev_b32 v233, 16, v232\nv_and_b32 v232, 0xffff, v232\nv_max_u32 v232, v232, v233")
    wave_reduce_dpp(e, "v_max_u32", 232)
    e(f"v_readlane_b32 s{sT0}, v232, 63\ns_lshl_b32 s{sT0+1}, s{sWAVE}, 2\ns_add_u32 s{sT0+1}, s{sT0+1}, {SCR_MAX}")
    e(f"s_nop 2\nv_mov_b32 v232, s{sT0}\nv_mov_b32 v233, s{sT0+1}\nds_write_b32 v233, v232")
    e.wait(lgkm=0); e("s_barrier")
    e(f"v_mov_b32 v233, {SCR_MAX}\nds_read_b128 v[236:239], v233\nds_read_b128 v[240:243], v233 offset:16")
    e("v_max_u32 v236, v236, v237\nv_max3_u32 v236, v236, v238, v239\nv_max3_u32 v236, v236, v240, v241\nv_max3_u32 v236, v236, v242, v243")
    e(f"v_readfirstlane_b32 s{sT0}, v236\ns_nop 3\ns_lshr_b32 s{sT0}, s{sT0}, 7\ns_max_u32 s{sT0}, s{sT0}, 25\ns_sub_u32 s{sT0}, s{sT0}, 25")
    e(f"s_sub_u32 s{sT0+1}, {S0}, s{sT0}\ns_cmp_le_u32 s{sT0+1}, 10")
    e.raw("s_cbranch_scc1 L_scale")
    e(f"s_mov_b32 s{sS}, s{sT0}\ns_mov_b32 s{sFLAG}, 1")
    e.raw("s_branch L_lut")
    e.label("L_scale")
    e(f"s_sub_u32 s{sNS}, 0, s{sS}\ns_mov_b32 s{sT0+6}, 0x07060302\ns_mov_b32 s{sT0+7}, 0x05040100")
    lmask = sum(1 << B for B in range(24) if c.cls[B] == 'L')
    for i in range(3):
        e(f"s_mul_i32 s{sT0}, s{sWAVE}, 3\ns_add_u32 s{sT0}, s{sT0}, {i}")
        e(f"s_lshr_b32 s{sT0+1}, s{sT0}, 3\ns_bfe_u32 s{sT0+2}, s{sT0}, 0x20001\ns_mul_i32 s{sT0+5}, s{sT0+2}, 6\ns_mul_i32 s{sT0+2}, s{sT0+2}, 18\ns_add_u32 s{sT0+1}, s{sT0+1}, s{sT0+2}")
        e(f"s_lshr_b32 s{sT0+5}, {lmask:#x}, s{sT0+5}\ns_and_b32 s{sT0+2}, s{sT0}, 1\ns_lshl_b32 s{sT0+2}, s{sT0+2}, 3")
        for el in range(6):
            e(f"s_add_u32 s{sT0+3}, s{sT0+1}, {3*el}\ns_cmp_ge_u32 s{sT0+3}, 56\ns_cselect_b32 s{sT0+4}, 16, 8")
            e(f"s_add_u32 s{sT0+3}, s{sT0+3}, s{sT0+4}\ns_lshl_b32 s{sT0+3}, s{sT0+3}, 10\ns_add_u32 s{sT0+3}, s{sT0+3}, s{sT0+2}")
            kinds = {c.cls[6*cg + el] for cg in range(4)}
            if kinds == {'L'}: ex = f"s{sNS}"
            elif kinds == {'V'}: ex = None
            else:
                e(f"s_bitcmp1_b32 s{sT0+5}, {el}\ns_cselect_b32 s{sT0+4}, s{sNS}, 0"); ex = f"s{sT0+4}"
            tp = 232 + 4*(el % 2)
            for a in range(2):
                r0 = WR + 16*i + 4*(2*a) + el//2; r1 = r0 + 4
                if ex is None:
                    e(f"v_perm_b32 v{tp+a}, v{r1}, v{r0}, s{sT0+6 if el % 2 else sT0+7}")
                else:
                    if el % 2: e(f"v_and_b32 v{tp+2}, 0xffff0000, v{r0}\nv_and_b32 v{tp+3}, 0xffff0000, v{r1}")
                    else: e(f"v_lshlrev_b32 v{tp+2}, 16, v{r0}\nv_lshlrev_b32 v{tp+3}, 16, v{r1}")
                    e(f"v_ldexp_f32 v{tp+2}, v{tp+2}, {ex}\nv_ldexp_f32 v{tp+3}, v{tp+3}, {ex}\nv_cvt_pk_bf16_f32 v{tp+a}, v{tp+2}, v{tp+3}")
            e(f"v_add_u32 v{240+el%2}, s{sT0+3}, v{vB0}\nds_write_b64 v{240+el%2}, {R(tp,2)}")
    e(f"s_lshl_b32 s{sLNO}, s2, 4\ns_add_u32 s{sLNO}, s{sLNO}, s{sWAVE}\ns_mul_i32 s{sLNO}, s{sLNO}, 6144")
    e(f"s_lshr_b32 s{sT0+1}, s{sWAVE}, 1\ns_lshl_b32 s{sT0+1}, s{sT0+1}, 1\ns_add_u32 s{sT0}, s{sY0}, s{sT0+1}\ns_lshl_b32 s{sT0}, s{sT0}, 9\ns_add_u32 s{sT0}, s{sT0}, s{sX0}")
    e(f"s_and_b32 s{sT0+1}, s{sWAVE}, 1\ns_lshl_b32 s{sT0+1}, s{sT0+1}, 4\ns_add_u32 s{sT0}, s{sT0}, s{sT0+1}\ns_mul_i32 s{sTILE}, s{sT0}, 192")
    for s in range(1, 4): e(f"s_add_u32 s{sTILE+s}, s{sTILE}, {8*s*ROWB}")

def ticket(e, phase):
    n = 252; L = f"L_tk{phase}"
    e.raw(f"s_cmp_lg_u32 s{sWAVE}, 7\ns_cbranch_scc1 {L}")
    if phase == 0:
        e(f"s_lshl_b32 s{sT0}, s{sREP}, 2\nv_mov_b32 v{n}, 1\nv_mov_b32 v{vT}, 0\ns_mov_b64 exec, 1")
        e.raw(f"buffer_atomic_add v{n}, v{vT}, s[{sDBG}:{sDBG+3}], s{sT0} offen sc0")
        e("s_mov_b64 exec, -1")
    elif phase == 1:
        e(f"v_readfirstlane_b32 s{sTK}, v{n}\ns_nop 3\ns_cmp_lg_u32 s{sTK}, 0")
        e.raw(f"s_cbranch_scc1 {L}")
        e(f"v_mov_b32 v{n}, 0\nv_mov_b32 v{n+1}, 0\nv_mov_b32 v{n+2}, 0\nv_mul_u32_u24 v{vT}, 12, v{vLANE}")
        e(f"s_mul_i32 s{sT0}, s{sREP}, 1536\ns_add_u32 s{sT0}, s{sT0}, {WS_SUM}\ns_lshl_b32 s{sT0+1}, s{sREP}, 7\ns_add_u32 s{sT0+1}, s{sT0+1}, {WS_CNT}")
        e.raw(f"buffer_store_dwordx3 {R(n,3)}, v{vT}, s[{sWS}:{sWS+3}], s{sT0} offen sc0 sc1\nbuffer_store_dwordx3 {R(n,3)}, v{vT}, s[{sWS}:{sWS+3}], s{sT0} offen offset:768 sc0 sc1")
        e.raw(f"buffer_store_dword v{n}, v{n+1}, s[{sWS}:{sWS+3}], s{sT0+1} offen sc0 sc1")
    else:
        e.raw(f"s_cmp_lg_u32 s{sTK}, 0\ns_cbranch_scc1 {L}")
        e(f"s_lshl_b32 s{sT0}, s{sREP}, 2\nv_mov_b32 v{n}, 1\nv_mov_b32 v{vT}, 0\ns_mov_b64 exec, 1")
        e.raw(f"buffer_atomic_add v{n}, v{vT}, s[{sDBG}:{sDBG+3}], s{sT0} offen offset:64")
        e("s_mov_b64 exec, -1")
    e.label(L)
    e("s_nop 1")

def conv(e, s):
    e(f"s_lshr_b32 s{sT0}, s{sWAVE}, 1\ns_add_u32 s{sT0}, s{sT0}, {(4*s) % 5}\ns_add_u32 s{sT0+1}, s{sT0}, 1")
    for k in range(2):
        e(f"s_cmp_ge_u32 s{sT0+k}, 5\ns_cselect_b32 s{sT0+2}, 5, 0\ns_sub_u32 s{sT0+k}, s{sT0+k}, s{sT0+2}\ns_mul_i32 s{sT0+k}, s{sT0+k}, {PAIRB}")
    e(f"s_sub_u32 s{sT0+1}, s{sT0+1}, s{sT0}\ns_add_u32 s{sT0}, s{sT0}, {RING}")
    e(f"v_mul_lo_u32 v{vT}, v{vHALF}, s{sT0+1}\nv_add_u32 v{vT}, s{sT0}, v{vT}")
    for dx in range(3): e(f"v_add_u32 v{vAD+dx}, v{vT}, v{vCB+dx}")
    sc = Sched()
    order = [(b, a) for b in range(4) for a in range(3)]
    for k, (b, a) in enumerate(order):
        cb = 4*a + b; buf = CBUF + 12*(k % 3); acc = ACC1 + 4*cb
        if a == 0 and b > 0:
            for dx in range(3): sc.add(k - 2.05, f"v_xor_b32 v{vAD+dx}, {16*(b ^ (b-1))}, v{vAD+dx}")
        sc.add(k - 2, f"ds_read_b128 {R(buf+8,4)}, v{vAD+2} offset:{64*a}")
        sc.add(k - 2, f"ds_read_b128 {R(buf,4)}, v{vAD} offset:{64*a}")
        sc.add(k - 2, f"ds_read_b128 {R(buf+4,4)}, v{vAD+1} offset:{64*a}")
        sc.add(k - 0.2, f"v_mfma_f32_16x16x32_bf16 {R(acc,4)}, {R(A2+4*cb,4)}, {R(buf+8,4)}, 0")
        sc.add(k - 0.1, f"v_smfmac_f32_16x16x64_bf16 {R(acc,4)}, {R(A1+4*cb,4)}, {R(buf,8)}, v{vIDX}")
        for i in range(4):
            tt = k + 1.5 + 0.01*i
            if k == 0 and i == 0:
                sc.add(tt, f"v_mov_b32 v{S1}, v{acc}"); sc.add(tt, f"v_mul_f32 v{S2}, v{acc}, v{acc}")
            else:
                sc.add(tt, f"v_add_f32 v{S1}, v{acc+i}, v{S1}"); sc.add(tt, f"v_fmac_f32 v{S2}, v{acc+i}, v{acc+i}")
    m = e.merge; e.merge = 0
    sc.emit(e); e.merge = m

def layernorm(e, LN):
    e(f"v_permlane32_swap_b32 v{S1}, v{S2}\nv_add_f32 v{S1}, v{S1}, v{S2}\nv_mov_b32 v{S2}, v{S1}\nv_permlane32_swap_b32 v{S1}, v{S2}")
    e(f"v_mul_f32 v{S1}, {0x3c2aaaab:#x}, v{S1}\nv_mul_f32 v{S2}, {0x3c2aaaab:#x}, v{S2}\nv_fma_f32 v{S2}, -v{S1}, v{S1}, v{S2}\nv_max_f32 v{S2}, 0, v{S2}")
    e(f"v_add_f32 v{S2}, {0x3727c5ac:#x}, v{S2}\nv_rsq_f32 v{S2}, v{S2}\nv_mul_f32 v{S2}, {K_NEGK:#x}, v{S2}\nv_mul_f32 v{S1}, v{S1}, v{S2}")
    for r in range(48): e(f"v_fma_f32 v{ACC1+r}, v{ACC1+r}, v{S2}, -v{S1}")
    for t3 in range(3):
        for a in range(2):
            for z in range(2):
                cb = 4*t3 + 2*a + z
                for i in range(2): e(f"v_cvt_pk_bf16_f32 v{LN+12*z+4*t3+2*a+i}, v{ACC1+4*cb+2*i}, v{ACC1+4*cb+2*i+1}")
    for k in range(12): e(f"v_permlane16_swap_b32 v{LN+k}, v{LN+12+k}")

def wread(sl, F):
    a = fragA(F); return f"ds_read_b128 {R(sl,4)}, v{vB0 if a < 65536 else vB1} offset:{a & 65535}"

def gemm1(e, c, LN, extra):
    sc = Sched(); nw = 3; lead = 2; f = 0; nT = 0
    order = list(range(24))
    for bi, B in enumerate(order):
        d = POOL + 8*(bi % 8); acc = SUM + B; sl = []
        for t in range(3):
            s_ = W + 4*(f % nw); f += 1; sl.append(s_)
            sc.add(bi + 2*(t - lead)/6 + 0.003, wread(s_, 3*B + t))
            for z in range(2):
                sc.add(bi + (2*t + z)/6, f"v_mfma_f32_16x16x32_bf16 {R(d+4*z,4)}, {R(LN+12*z+4*t,4)}, {R(s_,4)}, {'0' if t == 0 else R(d+4*z,4)}")
        if c.cls[B] == 'L':
            ng = [1,1,2,1,1,2]; r = d
            for k in range(6):
                ts = bi + 1 + (k+1)/6
                for _ in range(ng[k]):
                    sc.add(ts - 0.002, f"v_lshlrev_b32_sdwa v{r}, v{vONE}, v{r} {SDWA1}")
                    sc.add(ts + 0.002, f"ds_read_u16_d16_hi v{r}, v{r}")
                    sc.add(ts + 1.35, f"v_add_f32 v{acc}, v{r}, v{acc}")
                    r += 1
        else:
            n = 1
            while bi + n < 24 and c.cls[order[bi + n]] != 'V': n += 1
            span = min(n, 3) if bi + n >= 24 else n
            tt = T1 + 8*(nT % 2); nT += 1
            stages = [lambda r, t: f"v_fmaak_f32 v{t}, v{r}, v{r}, {K_A:#x}", lambda r, t: f"v_mul_f32 v{t}, v{r}, v{t}", lambda r, t: f"v_exp_f32 v{t}, v{t}",
                      lambda r, t: f"v_add_f32 v{t}, 1.0, v{t}", lambda r, t: f"v_rcp_f32 v{t}, v{t}", lambda r, t: f"v_mul_f32 v{t}, v{r}, v{t}", lambda r, t: f"v_fmac_f32 v{acc}, v{t}, v{t}"]
            wt = [1,1,2,1,2,1,1]; cum = 0
            for hh in range(2):
                for si, fn in enumerate(stages):
                    for k in range(4): sc.add(bi + 1.2 + span*(cum + wt[si]*k/4)/18, fn(d + 4*hh + k, tt + 4*hh + k))
                    cum += wt[si]
    for k, (t, g) in enumerate(extra):
        for i, l in enumerate(g): sc.add(t + 0.004 + 1e-5*i, l)
    emit_prio(sc, e, c.prio1)

def ln_mem(op, tile, base):
    o = []
    for k in range(6):
        o.append([f"s_add_u32 s{sT0+2}, s{sLNO}, {tile*8*6144 + 1024*k}", f"buffer_{op}_dwordx4 {R(base+4*k,4)}, v{vB0}, s[{sWS}:{sWS+3}], s{sT0+2} offen"])
    return o

WR2 = 40; GBR = 88
def w2_loads():
    o = [[f"v_lshrrev_b32 v{vT}, 4, v{vLANE}", f"v_mul_u32_u24 v100, 48, v{vT}", f"v_mul_u32_u24 v{vT}, {24*192}, v{vT}", f"v_and_b32 v101, 15, v{vLANE}", f"v_mul_u32_u24 v101, 12, v101", f"v_add_u32 v101, v101, v{vT}"]]
    for i in range(3):
        pre = [f"s_mul_i32 s{sT0+3}, s{sWAVE}, 3", f"s_add_u32 s{sT0+3}, s{sT0+3}, {i}", f"s_mul_i32 s{sT0+4}, s{sT0+3}, 43", f"s_lshr_b32 s{sT0+4}, s{sT0+4}, 8",
               f"s_mul_i32 s{sT0+4}, s{sT0+4}, 90", f"s_add_u32 s{sT0+3}, s{sT0+3}, s{sT0+4}", f"s_mul_i32 s{sT0+4}, s{sT0+3}, 192", f"s_lshl_b32 s{sT0+3}, s{sT0+3}, 1"]
        for jj in range(4):
            o.append((pre if jj == 0 else []) + [f"buffer_load_dwordx3 {R(WR2+16*i+4*jj,3)}, v101, s[{sW2}:{sW2+3}], s{sT0+4} offen offset:{6*192*jj}",
                     f"buffer_load_ushort v{GBR+4*i+jj}, v100, s[{sGB}:{sGB+3}], s{sT0+3} offen offset:{12*jj}"])
    o.append([f"s_lshl_b32 s{sT0+3}, s{sREP}, 2", f"v_mov_b32 v103, 0", f"buffer_load_dword v102, v103, s[{sDBG}:{sDBG+3}], s{sT0+3} offen offset:64 sc0 sc1"])
    return o

def units(c):
    V = [B for B in range(24) if c.cls[B] == 'V']; L = [B for B in range(24) if c.cls[B] == 'L']
    U = []
    nLL = 12 - len(V); acc = 0
    Lq = list(L); Vq = list(V)
    for u in range(12):
        acc += nLL
        if acc >= 12 or not Vq:
            acc -= 12; U.append((Lq.pop(0), Lq.pop(0)))
        else: U.append((Vq.pop(0), Lq.pop(0)))
    assert not Lq and not Vq
    return U

def sync1(e, c, st):
    for k in range(0, 24, 2): e(f"v_permlane16_swap_b32 v{SUM+k}, v{SUM+k+1}")
    for k in range(0, 24, 2): e(f"v_add_f32 v{SUM+k}, v{SUM+k}, v{SUM+k+1}")
    for k in range(0, 24, 4): e(f"v_permlane32_swap_b32 v{SUM+k}, v{SUM+k+2}")
    for k in range(0, 24, 4): e(f"v_add_f32 v{SUM+k}, v{SUM+k}, v{SUM+k+2}")
    e(f"s_mul_i32 s{sT0}, s{sWAVE}, 1536\ns_add_u32 s{sT0}, s{sT0}, {RED}\nv_lshlrev_b32 v{vT}, 2, v{vLANE}\nv_add_u32 v160, s{sT0}, v{vT}")
    for k in range(6): e(f"ds_write_b32 v160, v{SUM+4*k} offset:{256*k}")
    e(f"s_lshl_b32 s{sT0}, s{sREP}, 2\nv_mov_b32 v161, 0\ns_mov_b32 s{sT0+1}, 0x100000")
    e(f"v_readfirstlane_b32 s{sT0+2}, v102\ns_nop 3\ns_cmp_lg_u32 s{sT0+2}, 0")
    e.raw("s_cbranch_scc1 L_flagged")
    e.label("L_flag")
    e(f"buffer_load_dword v162, v161, s[{sDBG}:{sDBG+3}], s{sT0} offen offset:64 sc0 sc1")
    e(f"v_readfirstlane_b32 s{sT0+2}, v162\ns_sub_u32 s{sT0+1}, s{sT0+1}, 1\ns_cmp_eq_u32 s{sT0+1}, 0")
    e.raw("s_cbranch_scc1 L_flagged")
    e(f"s_cmp_eq_u32 s{sT0+2}, 0")
    e.raw("s_cbranch_scc1 L_flag")
    e.label("L_flagged")
    e.wait(lgkm=0); e("s_barrier"); st(e, 'B1')
    e.raw(f"s_cmp_ge_u32 s{sWAVE}, 6\ns_cbranch_scc1 L_noat")
    e(f"v_lshlrev_b32 v160, 2, v0\nv_add_u32 v161, {RED}, v160")
    for w in range(8): e(f"ds_read_b32 v{164+w}, v161 offset:{1536*w}")
    for w in range(1, 8): e(f"v_add_f32 v164, v164, v{164+w}")
    e(f"s_mul_i32 s{sT0}, s{sREP}, 1536\ns_add_u32 s{sT0}, s{sT0}, {WS_SUM}")
    e.raw(f"buffer_atomic_add_f32 v164, v160, s[{sWS}:{sWS+3}], s{sT0} offen")
    e.label("L_noat")
    lut_build(e, False, 176)
    e.raw(f"s_cmp_ge_u32 s{sWAVE}, 6\ns_cbranch_scc1 L_nocnt\ns_waitcnt vmcnt(0)")
    e(f"s_lshl_b32 s{sT0}, s{sREP}, 7\ns_add_u32 s{sT0}, s{sT0}, {WS_CNT}\nv_mov_b32 v200, 1\nv_mov_b32 v201, 0\ns_mov_b64 exec, 1")
    e.raw(f"buffer_atomic_add v200, v201, s[{sWS}:{sWS+3}], s{sT0} offen")
    e("s_mov_b64 exec, -1")
    e.label("L_nocnt")
    UB = 160
    for i in range(3):
        for jj in range(4):
            e(f"v_lshlrev_b32 v{GBR+4*i+jj}, 16, v{GBR+4*i+jj}")
    for o in range(6):
        for i in range(3):
            for jj in range(4):
                src = WR2 + 16*i + 4*jj + o//2
                t = 200 + (jj & 1)
                e(f"v_and_b32 v{t}, 0xffff0000, v{src}" if o % 2 else f"v_lshlrev_b32 v{t}, 16, v{src}")
                if i == 0 and jj == 0: e(f"v_mul_f32 v{204+o}, v{t}, v{GBR}")
                else: e(f"v_fmac_f32 v{204+o}, v{t}, v{GBR+4*i+jj}")
    for k in range(0, 6, 2): e(f"v_permlane16_swap_b32 v{204+k}, v{205+k}")
    for k in range(0, 6, 2): e(f"v_add_f32 v{204+k}, v{204+k}, v{205+k}")
    e("v_mov_b32 v209, v208\nv_permlane32_swap_b32 v204, v206\nv_permlane32_swap_b32 v208, v209\nv_add_f32 v204, v204, v206\nv_add_f32 v208, v208, v209")
    e(f"v_and_b32 v200, 15, v{vLANE}\nv_mul_u32_u24 v200, 6, v200\nv_lshrrev_b32 v201, 4, v{vLANE}\nv_add_u32 v202, v200, v201\nv_and_b32 v201, 1, v201\nv_add3_u32 v203, v200, v201, 4")
    e(f"s_mul_i32 s{sT0}, s{sWAVE}, 384\ns_add_u32 s{sT0}, s{sT0}, {REDB}\nv_lshl_add_u32 v202, v202, 2, s{sT0}\nv_lshl_add_u32 v203, v203, 2, s{sT0}")
    e("ds_write_b32 v202, v204\nds_write_b32 v203, v208")
    e.wait(lgkm=0); e("s_barrier"); st(e, 'B2')
    e.raw(f"s_cmp_lt_u32 s{sWAVE}, 6\ns_cbranch_scc1 L_nob2")
    e(f"v_subrev_u32 v200, 384, v0\nv_lshlrev_b32 v200, 2, v200\nv_add_u32 v201, {REDB}, v200")
    for w in range(8): e(f"ds_read_b32 v{204+w}, v201 offset:{384*w}")
    for w in range(1, 8): e(f"v_add_f32 v204, v204, v{204+w}")
    e(f"v_add_u32 v200, {B2F}, v200\nds_write_b32 v200, v204")
    e.label("L_nob2")
    e.wait(lgkm=0)
    srd(e, sOUT, sPOUT, XBYTES); srd(e, sG, sPG, 768)
    e(f"v_add_u32 v{vB2}, 0x20000, v{vB0}\nv_lshrrev_b32 v200, 4, v{vLANE}\nv_mul_u32_u24 v200, 192, v200\nv_and_b32 v201, 15, v{vLANE}\nv_mul_u32_u24 v201, 12, v201\nv_add_u32 v{vOP}, v200, v201")
    e(f"v_lshrrev_b32 v200, 4, v{vLANE}\ns_mul_i32 s{sT0}, s{sWAVE}, 3\nv_add_u32 v200, s{sT0}, v200\nv_mul_u32_u24 v202, 43, v200\nv_lshrrev_b32 v202, 8, v202\nv_mul_u32_u24 v202, 90, v202\nv_add_u32 v200, v200, v202")
    e(f"v_mul_u32_u24 v201, 6, v{vLANE}\nv_and_b32 v202, 15, v{vLANE}\nv_mul_u32_u24 v201, 6, v202\nv_add_u32 v200, v200, v201\nv_lshlrev_b32 v200, 1, v200")
    e(f"buffer_load_ushort v100, v200, s[{sG}:{sG+3}], 0 offen")

def sync2(e, c, st):
    U = units(c); pos = {B: (u, H) for u, p in enumerate(U) for H, B in enumerate(p)}
    e.vm = []
    e.raw(f"s_cmp_lg_u32 s{sWAVE}, 0\ns_cbranch_scc1 L_arrived")
    e(f"v_and_b32 v101, {NREP-1}, v{vLANE}\nv_lshlrev_b32 v101, 7, v101\ns_mov_b32 s{sT0}, {WS_CNT}\ns_mov_b32 s{sT0+1}, 0x100000")
    e.label("L_poll")
    e(f"buffer_load_dword v102, v101, s[{sWS}:{sWS+3}], s{sT0} offen sc0 sc1")
    e(f"v_cmp_gt_u32 vcc, {6*256//NREP}, v102\ns_sub_u32 s{sT0+1}, s{sT0+1}, 1\ns_cmp_eq_u32 s{sT0+1}, 0")
    e.raw("s_cbranch_scc1 L_arrived\ns_nop 4\ns_cbranch_vccnz L_poll")
    e.label("L_arrived")
    st(e, 'pre'); e("s_barrier"); st(e, 'B3')
    e(f"s_mul_i32 s{sT0}, s{sWAVE}, 192\ns_add_u32 s{sT0}, s{sT0}, {WS_SUM}\nv_lshlrev_b32 v101, 2, v{vLANE}")
    for r in range(NREP):
        e(f"buffer_load_dword v{102+r}, v101, s[{sWS}:{sWS+3}], s{sT0} offen sc0 sc1\ns_add_u32 s{sT0}, s{sT0}, 1536")
    e(f"v_and_b32 v110, 15, v{vLANE}\nv_mul_u32_u24 v110, 24, v110\nv_add_u32 v110, {B2F}, v110")
    for k in range(3): e(f"ds_read_b64 {R(BIAS+2*k,2)}, v110 offset:{8*k}")
    e.wait(vm=0)
    for r in range(1, NREP): e(f"v_add_f32 v102, v102, v{102+r}")
    e(f"v_mov_b32 v103, {0x358637bd:#x}\nv_fmac_f32 v103, {K_INVK2:#x}, v102\nv_sqrt_f32 v103, v103")
    e(f"v_cmp_gt_u32 vcc, 48, v{vLANE}\ns_nop 1\nv_cndmask_b32 v103, 0, v103, vcc\nv_mov_b32 v104, v103")
    wave_reduce_dpp(e, "v_add_f32", 104)
    e(f"v_readlane_b32 s{sT0}, v104, 63\ns_lshl_b32 s{sT0+1}, s{sWAVE}, 2\ns_add_u32 s{sT0+1}, s{sT0+1}, {MEANR}\ns_nop 2\nv_mov_b32 v104, s{sT0}\nv_mov_b32 v105, s{sT0+1}\nds_write_b32 v105, v104")
    e.wait(lgkm=0); e("s_barrier")
    e(f"v_mov_b32 v105, {MEANR}\nds_read_b128 v[16:19], v105\nds_read_b128 v[20:23], v105 offset:16")
    for r in range(1, 8): e(f"v_add_f32 v16, v16, v{16+r}")
    e(f"v_mov_b32 v104, {0x358637bd:#x}\nv_fmac_f32 v104, {0x3b2aaaab:#x}, v16\nv_rcp_f32 v104, v104\nv_lshlrev_b32 v100, 16, v100\nv_mul_f32 v103, v103, v104")
    e(f"v_fma_f32 v103, v103, v100, 1.0\nv_mul_f32 v103, {K_NINVK:#x}, v103")
    e(f"v_lshrrev_b32 v104, 4, v{vLANE}\nv_lshlrev_b32 v104, 4, v104")
    for i in range(3):
        for jj in range(4): e(f"ds_bpermute_b32 v{16+4*i+jj}, v104, v103 offset:{64*i+4*jj}")
    e.wait(lgkm=0); e("s_barrier")
    lo = sum((pos[B][0]*2 + pos[B][1]) << (5*(B % 6)) for B in range(6))
    tabs = [sum((pos[6*g+k][0]*2 + pos[6*g+k][1]) << (5*k) for k in range(6)) for g in range(4)]
    for i in range(3):
        e(f"s_mul_i32 s{sT0}, s{sWAVE}, 3\ns_add_u32 s{sT0}, s{sT0}, {i}\ns_mul_i32 s{sT0+1}, s{sT0}, 43\ns_lshr_b32 s{sT0+1}, s{sT0+1}, 8\ns_mul_i32 s{sT0+2}, s{sT0+1}, 6\ns_sub_u32 s{sT0}, s{sT0}, s{sT0+2}\ns_mul_i32 s{sT0}, s{sT0}, 5")
        e(f"s_mov_b32 s{sT0+2}, {tabs[0]:#x}")
        for g in range(1, 4): e(f"s_cmp_eq_u32 s{sT0+1}, {g}\ns_cselect_b32 s{sT0+2}, {tabs[g]:#x}, s{sT0+2}")
        e(f"s_lshr_b32 s{sT0+2}, s{sT0+2}, s{sT0}\ns_and_b32 s{sT0}, s{sT0+2}, 1\ns_lshl_b32 s{sT0}, s{sT0}, 3\ns_bfe_u32 s{sT0+2}, s{sT0+2}, 0x40001\ns_mul_i32 s{sT0+2}, s{sT0+2}, 6144\ns_add_u32 s{sT0}, s{sT0}, s{sT0+2}\ns_add_u32 s{sT0}, s{sT0}, {W2L}")
        e(f"v_add_u32 v104, s{sT0}, v{vB0}")
        for o in range(6):
            tp = 96 + 2*(o % 2)
            for a in range(2):
                for z in range(2):
                    src = WR2 + 16*i + 4*(2*a+z) + o//2
                    e(f"v_and_b32 v{100+z}, 0xffff0000, v{src}" if o % 2 else f"v_lshlrev_b32 v{100+z}, 16, v{src}")
                for z in range(2): e(f"v_mul_f32 v{100+z}, v{100+z}, v{16+4*i+2*a+z}")
                e(f"v_cvt_pk_bf16_f32 v{tp+a}, v100, v101")
            e(f"ds_write_b64 v104, {R(tp,2)} offset:{1024*o}")
    e.wait(lgkm=0); e("s_barrier"); st(e, 'B6')

class Pass2:
    def __init__(self, c): self.c = c; self.U = units(c); self.f = 0; self.nT = 0; self.nw = 3; self.lead = 2
    NS = 48.0; NQ = 24.0
    def frag(self, sc, tm, text_fn, tmin):
        sl = W + 4*(self.f % self.nw); self.f += 1
        sc.add(max(tm - self.lead*4/self.NS + 0.0004, tmin), text_fn(sl)); return sl
    def G1(self, sc, t0, j, tmin=-99):
        for H in range(2):
            for t in range(3):
                tm = t0 + 4*(3*H + t)/self.NS; sl = self.frag(sc, tm, lambda s: wread(s, 3*self.U[j][H] + t), tmin)
                for xz in range(4):
                    d = D + 32*(j % 2) + 8*xz + 4*H
                    sc.add(tm + xz/self.NS, f"v_mfma_f32_16x16x32_bf16 {R(d,4)}, {R(sl,4)}, {R(LN2+12*xz+4*t,4)}, {'0' if t == 0 else R(d,4)}")
    def G2(self, sc, t0, j, tmin=-99):
        for o in range(6):
            a = W2L + 6144*j + 1024*o
            tm = t0 + 4*o/self.NS; sl = self.frag(sc, tm, lambda s: f"ds_read_b128 {R(s,4)}, v{(vB0, vB1, vB2)[a >> 16]} offset:{a & 65535}", tmin)
            ct = CT[o % 2]
            if j == 0:
                for i in range(4): sc.add(max(tm - 3.5/self.NS, tmin), f"v_mov_b32 v{ct+i}, v{BIAS+o}")
            for xz in range(4):
                d = ACC + 24*xz + 4*o
                sc.add(tm + xz/self.NS, f"v_mfma_f32_16x16x32_bf16 {R(d,4)}, {R(D+32*(j%2)+8*xz,4)}, {R(sl,4)}, {R(ct,4) if j == 0 else R(d,4)}")
    def GELU(self, sc, t0, j):
        NQ, NS = self.NQ, self.NS
        for q in range(4):
            d = D + 32*(j % 2) + 8*q
            tq = t0 + (0.5 + (NQ - 8.0)*q/3)/NQ
            Lp = [p for p in range(4) if self.c.cls[self.U[j][p >> 1]] == 'L']; Vp = [p for p in range(4) if p not in Lp]
            for k, p in enumerate(Lp):
                ts = round((tq + (k + 0.5)/NQ)*NS)/NS
                for z in range(2):
                    r = d + 2*p + z
                    sc.add(ts - 0.002, f"v_lshlrev_b32_sdwa v{r}, v{vONE}, v{r} {SDWA1}")
                    sc.add(ts + 0.002, f"ds_read_u16_d16{'_hi' if z else ''} v{r}, v{r}")
            els = [(d + 2*p + z) for p in Vp for z in range(2)]
            tr = []
            for r in els: tr.append(T2 + self.nT % 8); self.nT += 1
            stages = [lambda r, t: f"v_fmaak_f32 v{t}, v{r}, v{r}, {K_A:#x}", lambda r, t: f"v_mul_f32 v{t}, v{r}, v{t}", lambda r, t: f"v_exp_f32 v{t}, v{t}",
                      lambda r, t: f"v_add_f32 v{t}, 1.0, v{t}", lambda r, t: f"v_rcp_f32 v{t}, v{t}", lambda r, t: f"v_mul_f32 v{t}, v{r}, v{t}"]
            for si, f in enumerate(stages):
                for k, (r, t) in enumerate(zip(els, tr)): sc.add(tq + (0.1 + si + 0.6*k/max(len(els),1))/NQ, f(r, t))
            for k, p in enumerate(Vp): sc.add(tq + (6.3 + 0.1*k)/NQ, f"v_cvt_pk_bf16_f32 v{d+p}, v{tr[2*k]}, v{tr[2*k+1]}")
            for k, p in enumerate(Lp): sc.add(tq + 7.2/NQ + 0.001*k, f"v_or_b32 v{d+p}, v{d+2*p}, v{d+2*p+1}")
    def rowbase(self, sc, t, tiles, xz, sreg):
        sc.add(t, f"s_add_u32 s{sreg}, s{sTILE+tiles[xz >> 1]}, {(xz & 1)*ROWB}")
    def resid(self, sc, b, tiles, k):
        xz, r = k >> 2, k & 3; tmp = TMP + 4*(k % 2); j = 2 + k//2
        tl = b + j - 0.29 + 0.2*(k % 2); ta = b + j + 0.56 + 0.2*(k % 2)
        self.rowbase(sc, tl, tiles, xz, sT0 + k % 2)
        sc.add(tl, f"buffer_load_dwordx3 {R(tmp,3)}, v{vOP}, s[{sX}:{sX+3}], s{sT0 + k % 2} offen offset:{768*r}")
        for o in range(6):
            a = ACC + 24*xz + 4*o + r; tt = ta + 0.025*o
            sc.add(tt, f"v_and_b32 v{tmp+3}, 0xffff0000, v{tmp+o//2}" if o % 2 else f"v_lshlrev_b32 v{tmp+3}, 16, v{tmp+o//2}")
            sc.add(tt + 0.01, f"v_add_f32 v{a}, v{tmp+3}, v{a}")
    def epilogue(self, sc, t0, tiles, span):
        for k in range(16):
            xz, r = k >> 2, k & 3; tmp = TMP + 4*(k % 2); tm = t0 + span*k/16
            for P in range(3): sc.add(tm, f"v_cvt_pk_bf16_f32 v{tmp+P}, v{ACC+24*xz+8*P+r}, v{ACC+24*xz+8*P+4+r}")
            self.rowbase(sc, tm, tiles, xz, sT0)
            sc.add(tm, f"buffer_store_dwordx3 {R(tmp,3)}, v{vOP}, s[{sOUT}:{sOUT+3}], s{sT0} offen offset:{768*r}{self.c.st_mod}")
    def pre(self, e):
        sc = Sched()
        self.G1(sc, -0.5, 0); self.G1(sc, 0.5, 1); self.GELU(sc, 0, 0); self.GELU(sc, 1, 1)
        emit_prio(sc, e, self.c.prio2)
    def main(self, e, st):
        sc = Sched()
        for pair in range(2):
            b = 13*pair; tiles = (3, 2) if pair == 0 else (0, 1)
            if pair == 1:
                self.G1(sc, b - 0.5, 0)
                self.epilogue(sc, b - 0.45, (3, 2), 1.4)
                self.G1(sc, b + 0.5, 1)
            for j in range(12):
                if j in (2, 6, 11): st(e, f'p{pair}j{j}', sc, b + j)
                if pair == 1 or j >= 2: self.GELU(sc, b + j, j)
                if j == 10 and pair == 0:
                    for k, g in enumerate(ln_mem("load", 0, LN2) + ln_mem("load", 1, LN2+24)):
                        for l in g: sc.add(b + 11.003 + 0.04*k, l)
                self.G2(sc, b + j + 1, j, tmin=0.9)
                for k in (2*j - 2, 2*j - 1):
                    if 0 <= k < 16: self.resid(sc, b, tiles, k)
                if j + 2 < 12: self.G1(sc, b + j + 1.5, j + 2)
        st(e, 'epi', sc, 25.5)
        self.epilogue(sc, 25.52, (0, 1), 0.3)
        emit_prio(sc, e, self.c.prio2)

def kernel(name, c):
    e = Emit(); e.merge = 0
    st = Stamps(c.stamp)
    st(e, 'rt0', real=True); st(e, 'entry')
    prologue(e, c, st)
    for s in range(4):
        e.wait(lgkm=0, vm=0); e("s_barrier")
        if s in (0, 3): st(e, f'go{s}')
        if s < 3: ticket(e, s)
        conv(e, s)
        e("s_barrier")
        LN = LNA if s < 3 else LN2
        layernorm(e, LN)
        extra = []
        if s < 3:
            g = sum((dma_ops(t) for t in range(4*s+5, 4*s+9)), [])
            extra += [(0.5 + 1.5*k, x) for k, x in enumerate(g)]
        if s < 2: extra += [(13.0 + 1.5*k, x) for k, x in enumerate(ln_mem("store", s, LN))]
        if s == 3: extra += [(1.0 + 1.5*k, x) for k, x in enumerate(w2_loads())]
        if s == 0: st(e, 'ln0')
        e.merge = c.merge
        gemm1(e, c, LN, extra)
        e.merge = 0
        if s in (0, 3): st(e, f'gemm{s}')
    sync1(e, c, st)
    p = Pass2(c)
    e.merge = c.merge
    p.pre(e)
    e.merge = 0
    sync2(e, c, st)
    e.merge = c.merge
    p.main(e, st)
    st(e, 'end'); st(e, 'rt1', real=True)
    if c.dbg is not None: st.flush_dbg(e, sDBG, sWAVE, c.dbg)
    else: st.flush(e, sWS, sWAVE, 0)
    e.label("L_end")
    e.raw("s_endpgm")
    return khead(name) + e.text() + "\n" + kdesc(name), st.names

if __name__ == '__main__':
    import sys
    HEADER = open('standalone__modern_conv_block_slak__vision.s.ref').read().split('; Override launch')[0]
    out = sys.argv[1] if len(sys.argv) > 1 else 'standalone__modern_conv_block_slak__vision.s'
    c = Cfg()
    for k, v in eval('dict(' + (sys.argv[2] if len(sys.argv) > 2 else '') + ')').items(): setattr(c, k, v)
    body, names = kernel('standalone__modern_conv_block_slak__vision_kernel', c)
    s = HEADER + "; @launch grid=(256,1,1) block=(512,1,1) lds=163840\n" + '.amdgcn_target "amdgcn-amd-amdhsa--gfx950"\n.text\n' + body
    if c.stamp: s += f'; STAMPS {names!r}\n'
    open(out, 'w').write(s)
```

```python
from asm import *
from common import *
RING = 90112; PAIRB = 13312; ROWL = 6656
SCR = RING + 5 * PAIRB
SCR_DW = SCR; SCR_MAX = SCR + 2048; SCR_DUMMY = SCR + 3072
W2L = RING
RED = RING; REDB = RING + 12288; B2F = 8192 - 512; MEANR = 65536 + 8192 - 512
WS_SUM = 0x3000000; WS_CNT = WS_SUM + NREP * 1536
S0 = 104
def fragA(F): return 8192 + 1024 * F if F < 56 else 73728 + 1024 * (F - 56)
vLANE = 1; vB0 = 2; vB1 = 3; vOFA = 4; vOFB = 5; vONE = 6; vIDX = 7; vCB = 8; vAD = 11; vHALF = 14; vT = 15
SUM = 16; A1 = 40; A2 = 88; LNA = 136
ACC1 = 160; CBUF = 208; S1, S2 = 244, 245
POOL = 160; T1 = 224; W = 240
vB2 = 4; vOP = 5; BIAS = 8
ACC = 16; LN2 = 112; D = 160; T2 = 224; TMP = 232; CT = (252, 232)
sX = 4; sWS = 8; sW1 = 12; sDW = 16; sW2 = 20; sGB = 24; sDBG = 28; sOUT = 12; sG = 16
sWAVE = 32; sX0 = 33; sY0 = 34; sS = 35; sNS = 36; sDMA = 37; sLNO = 38; sMB = 39; sMA = 40; sREP = 41; sTK = 42; sFLAG = 43; sMIX = 39; sOK = 40; sWA = 33; sT0 = 44
sPG = 56; sPOUT = 60
sTILE = 52

def emit_prio(sc, e, n):
    if not n: return sc.emit(e)
    order = sorted(sc.ops, key=lambda o: (o[0], o[1])); sc.check(order)
    m = 0; k = 0
    e("s_setprio 3")
    for (_, _, text) in order:
        e(text)
        if text.startswith('v_mfma'):
            m += 1
            if m % n == 0: k += 1; e(f"s_setprio {3 - k % 4}")
    e("s_setprio 0"); sc.ops = []

class Cfg:
    prio1 = 12; prio2 = 12
    cls = "LVLLVL" * 3 + "LLLLLL"
    merge = 12
    prio = 0
    stamp = False
    st_mod = ""
    remap = False
    dbg = None
    tpoll = 0.55
    sum_mod = ' sc0 sc1'
    mix = True
    vphase = 0
    nospill = False
    sp0 = 13.0
    ssp = 1.5
    sp_mod = ''
    x_mod = ''
    dsp = 1.5
    pf = 4
    x2_mod = ''
    espan = 1.18

XMOD = ['']
def dma_ops(t, first=False, offA=vOFA, offB=vOFB):
    slot = (t % 5) * PAIRB + RING
    so = "0" if first else f"s{sT0}"
    pre = [] if first else [f"s_add_u32 s{sT0}, s{sDMA}, {2*t*ROWB}"]
    ga = pre + [f"s_add_u32 m0, s{sMA}, {slot}", "s_nop 0", f"buffer_load_dwordx4 v{offA}, s[{sX}:{sX+3}], {so} offen{XMOD[0]} lds"]
    gb = pre + [f"s_add_u32 s{sT0+1}, s{sMB}, {slot}", f"s_cmp_lt_u32 s{sWAVE}, 5", f"s_cselect_b32 m0, s{sT0+1}, {SCR_DUMMY}", "s_nop 0",
                f"buffer_load_dwordx4 v{offB}, s[{sX}:{sX+3}], {so} offen{XMOD[0]} lds"]
    return [ga, gb]

def lut_build(e, square, base):
    b = base
    e(f"v_lshlrev_b32 v{b+1}, 19, v0\nv_or_b32 v{b+1}, 0x8000, v{b+1}\nv_lshlrev_b32 v{b}, 4, v0\nv_add_u32 v{b+2}, 0x10000, v{b}")
    X = b + 4; Y = b + 8; O = b + 12
    for q in range(0, 8, 4):
        for z in range(4): e(f"v_add_u32 v{X+z}, {(q+z)<<16:#x}, v{b+1}")
        for z in range(4): e(f"v_ldexp_f32 v{X+z}, v{X+z}, s{sS}")
        for z in range(4): e(f"v_fmaak_f32 v{Y+z}, v{X+z}, v{X+z}, {K_A:#x}")
        for z in range(4): e(f"v_mul_f32 v{Y+z}, v{X+z}, v{Y+z}")
        for z in range(4): e(f"v_exp_f32 v{Y+z}, v{Y+z}")
        for z in range(4): e(f"v_add_f32 v{Y+z}, 1.0, v{Y+z}")
        for z in range(4): e(f"v_rcp_f32 v{Y+z}, v{Y+z}")
        for z in range(4): e(f"v_mul_f32 v{Y+z}, v{X+z}, v{Y+z}")
        for z in range(4): e(f"v_sub_f32 v{X+z}, v{Y+z}, v{X+z}")
        if square:
            for z in range(8): e(f"v_mul_f32 v{X+z}, v{X+z}, v{X+z}")
        e(f"v_cvt_pk_bf16_f32 v{O+q//2}, v{Y}, v{Y+1}\nv_cvt_pk_bf16_f32 v{O+1+q//2}, v{Y+2}, v{Y+3}")
        e(f"v_cvt_pk_bf16_f32 v{O+4+q//2}, v{X}, v{X+1}\nv_cvt_pk_bf16_f32 v{O+5+q//2}, v{X+2}, v{X+3}")
    e(f"ds_write_b128 v{b}, {R(O,4)}\nds_write_b128 v{b+2}, {R(O+4,4)}")

def WR(i, jj):
    L = 4*i + jj
    return SUM + 4*L if L < 6 else LNA + 4*(L - 6)

def prologue(e, c, st):
    e("s_cmp_ge_u32 s2, 256"); e.raw("s_cbranch_scc1 L_end")
    e("s_load_dwordx16 s[48:63], s[0:1], 0\ns_load_dwordx2 s[64:65], s[0:1], 64")
    e(f"v_and_b32 v{vLANE}, 63, v0\nv_lshrrev_b32 v{vT}, 6, v0\nv_lshlrev_b32 v{vB0}, 4, v{vLANE}")
    e(f"v_readfirstlane_b32 s{sWAVE}, v{vT}")
    e(f"v_add_u32 v{vB1}, 0x10000, v{vB0}\nv_mov_b32 v{vONE}, 1\nv_lshrrev_b32 v{vHALF}, 5, v{vLANE}")
    if c.remap:
        e(f"s_and_b32 s{sT0}, s2, 7\ns_lshl_b32 s{sT0}, s{sT0}, 5\ns_lshr_b32 s{sT0+1}, s2, 3\ns_add_u32 s3, s{sT0}, s{sT0+1}")
    else: e("s_mov_b32 s3, s2")
    e(f"s_and_b32 s{sX0}, s3, 15\ns_lshl_b32 s{sX0}, s{sX0}, 5\ns_lshr_b32 s{sY0}, s3, 4\ns_lshl_b32 s{sY0}, s{sY0}, 5")
    e(f"s_and_b32 s{sREP}, s2, {NREP-1}\ns_mov_b32 s{sS}, {S0}\ns_mov_b32 s{sFLAG}, 0")
    e(f"s_lshl_b32 s{sMA}, s{sWAVE}, 10\ns_add_u32 s{sMB}, s{sMA}, 8192")
    e(f"s_lshl_b32 s{sT0}, s{sY0}, 9\ns_add_u32 s{sT0}, s{sT0}, s{sX0}\ns_sub_u32 s{sT0}, s{sT0}, 513\ns_mul_i32 s{sDMA}, s{sT0}, 192")
    for (off, add, o0) in ((vOFA, 0, 24), (vOFB, 512, 25)):
        e(f"s_lshl_b32 s{sT0}, s{sWAVE}, 6\ns_add_u32 s{sT0}, s{sT0}, {add}")
        e(f"v_add_u32 v17, s{sT0}, v{vLANE}")
        e(f"v_cmp_le_u32 vcc, 416, v17\ns_nop 1\nv_cndmask_b32 v18, 0, 1, vcc")
        e(f"v_mul_u32_u24 v19, 416, v18\nv_sub_u32 v19, v17, v19")
        e(f"v_mul_u32_u24 v20, 5462, v19\nv_lshrrev_b32 v20, 16, v20")
        e(f"v_mul_u32_u24 v21, 12, v20\nv_sub_u32 v21, v19, v21")
        e(f"v_bfe_u32 v22, v20, 2, 2\nv_xor_b32 v21, v21, v22")
        e(f"v_lshl_add_u32 v22, v18, 9, v20\nv_mul_u32_u24 v22, 192, v22\nv_lshl_add_u32 v22, v21, 4, v22")
        e(f"v_add_u32 v23, s{sX0}, v20\nv_subrev_u32 v23, 1, v23\nv_mov_b32 v21, {OOB:#x}")
        e(f"v_cmp_gt_u32 vcc, 512, v23\nv_cmp_gt_u32 s[{sT0}:{sT0+1}], 34, v20\ns_and_b64 vcc, vcc, s[{sT0}:{sT0+1}]")
        e(f"v_cmp_gt_u32 s[{sT0}:{sT0+1}], v17, v{vONE}\nv_mov_b32 v26, 832\nv_cmp_gt_u32 s[{sT0}:{sT0+1}], v26, v17\ns_and_b64 vcc, vcc, s[{sT0}:{sT0+1}]\ns_nop 1\nv_cndmask_b32 v{off}, v21, v22, vcc")
        e(f"v_add_u32 v22, s{sDMA}, v22\nv_add_u32 v23, s{sY0}, v18\nv_cmp_lt_u32 s[{sT0}:{sT0+1}], 0, v23\ns_and_b64 vcc, vcc, s[{sT0}:{sT0+1}]\ns_nop 1\nv_cndmask_b32 v{o0}, v21, v22, vcc")
    e.raw("s_waitcnt lgkmcnt(0)")
    srd(e, sX, 48, XBYTES); srd(e, sDW, 50, 1728)
    e(f"s_and_b32 s{sT0}, s{sWAVE}, 1\ns_lshl_b32 s{sT0}, s{sT0}, 10\ns_add_u32 m0, s{sT0}, {SCR_DW}\ns_nop 0\nbuffer_load_dwordx4 v{vB0}, s[{sDW}:{sDW+3}], s{sT0} offen lds")
    for g in dma_ops(0, True, 24, 25) + sum((dma_ops(t) for t in range(1, 5)), []):
        for l in g: e(l)
    st(e, 'xiss')
    srd(e, sW1, 52, 73728); srd(e, sW2, 54, 73728); srd(e, sGB, 58, 768); srd(e, sDBG, 62, 256); srd(e, sWS, 64, WSBYTES)
    lut_build(e, True, 208)
    e(f"v_and_b32 v17, 3, v{vLANE}\nv_bfe_u32 v18, v{vLANE}, 2, 2\nv_lshl_add_u32 v17, v17, 2, v18\nv_bfe_u32 v18, v{vLANE}, 4, 1")
    e(f"s_and_b32 s{sT0}, s{sWAVE}, 1\ns_lshl_b32 s{sT0}, s{sT0}, 4")
    for dx in range(3):
        e(f"v_add_u32 v19, s{sT0}, v17\nv_add_u32 v19, {dx}, v19")
        e(f"v_bfe_u32 v20, v19, 2, 2\nv_lshlrev_b32 v20, 4, v20\nv_mul_u32_u24 v19, 192, v19\nv_add_u32 v19, v19, v20")
        e(f"v_mul_u32_u24 v20, {ROWL}, v18\nv_add_u32 v{vCB+dx}, v19, v20")
    e(f"v_bfe_u32 v232, v{vLANE}, 2, 1\nv_bfe_u32 v233, v{vLANE}, 3, 1\nv_and_b32 v234, 3, v{vLANE}\nv_lshl_add_u32 v235, v233, 2, v234\nv_lshrrev_b32 v236, 4, v{vLANE}")
    def waddr(dst, dyreg, dxexpr):
        e(f"v_mul_u32_u24 v237, 3, v{dyreg}\nv_add_u32 v237, {dxexpr}, v237\nv_mul_u32_u24 v237, 96, v237\nv_add_u32 v237, v237, v235")
        e(f"v_lshlrev_b32 v237, 1, v237\nv_add_u32 v237, {SCR_DW}, v237\nv_mov_b32 v238, {SCR_DW+1792}")
        e(f"v_cmp_gt_u32 vcc, 3, v{dyreg}\ns_nop 1\nv_cndmask_b32 v{dst}, v238, v237, vcc")
    e(f"v_and_b32 v239, 1, v236\nv_lshlrev_b32 v239, 1, v239\nv_sub_u32 v239, v239, v232")
    waddr(240, 239, f"v{vHALF}")
    e("v_add_u32 v239, 1, v239"); waddr(241, 239, f"v{vHALF}")
    e("v_sub_u32 v239, v236, v232"); waddr(242, 239, "2")
    e(f"v_xor_b32 v237, 1, v234\nv_lshl_or_b32 v237, v237, 2, v234\nv_mul_u32_u24 v{vIDX}, 0x1111, v237")
    e(f"v_subrev_u32 v243, 1, v233\nv_not_b32 v244, v243")
    e(f"v_and_b32 v245, 1, v235\nv_lshlrev_b32 v245, 4, v245\nv_lshrrev_b32 v237, 1, v235")
    for r in range(4):
        e(f"v_cmp_eq_u32 vcc, {r}, v237\ns_nop 1\nv_cndmask_b32 v{246+r}, 0, -1, vcc")
    e.wait(vm=10); e("s_barrier")
    e(f"v_and_b32 v250, 15, v{vLANE}\nv_mul_u32_u24 v250, 12, v250\nv_bfe_u32 v251, v{vLANE}, 4, 1\nv_lshlrev_b32 v251, 1, v251\nv_add_u32 v251, v251, v{vHALF}\nv_mul_u32_u24 v251, {4*768}, v251\nv_add_u32 v250, v250, v251")
    for i in range(3):
        e(f"s_mul_i32 s{sT0}, s{sWAVE}, 3\ns_add_u32 s{sT0}, s{sT0}, {i}")
        e(f"s_lshr_b32 s{sT0+1}, s{sT0}, 3\ns_mul_i32 s{sT0+1}, s{sT0+1}, {32*768}")
        e(f"s_and_b32 s{sT0+2}, s{sT0}, 1\ns_mul_i32 s{sT0+2}, s{sT0+2}, {16*768}\ns_add_u32 s{sT0+1}, s{sT0+1}, s{sT0+2}")
        e(f"s_bfe_u32 s{sT0+2}, s{sT0}, 0x20001\ns_mul_i32 s{sT0+2}, s{sT0+2}, 192\ns_add_u32 s{sT0+1}, s{sT0+1}, s{sT0+2}")
        for jj in range(4):
            e(f"buffer_load_dwordx3 {R(WR(i,jj), 3)}, v250, s[{sW1}:{sW1+3}], s{sT0+1} offen offset:{768*jj}")
    st(e, 'wiss')
    for cb in range(12):
        e(f"ds_read_u16 v{A1+4*cb}, v240 offset:{16*cb}\nds_read_u16 v{A1+4*cb+2}, v241 offset:{16*cb}\nds_read_u16 v{A2+4*cb}, v242 offset:{16*cb}")
    for cb in range(12):
        a = A1 + 4*cb; b = A2 + 4*cb
        e(f"v_and_b32 v{a+1}, v244, v{a}\nv_and_b32 v{a}, v243, v{a}\nv_and_b32 v{a+3}, v244, v{a+2}\nv_and_b32 v{a+2}, v243, v{a+2}")
        e(f"v_lshlrev_b32 v{b}, v245, v{b}\nv_and_b32 v{b+1}, v247, v{b}\nv_and_b32 v{b+2}, v248, v{b}\nv_and_b32 v{b+3}, v249, v{b}\nv_and_b32 v{b}, v246, v{b}")
    st(e, 'cvA')
    e(f"s_lshl_b32 s{sLNO}, s2, 4\ns_add_u32 s{sLNO}, s{sLNO}, s{sWAVE}\ns_mul_i32 s{sLNO}, s{sLNO}, 6144")
    e(f"s_lshr_b32 s{sT0+1}, s{sWAVE}, 1\ns_lshl_b32 s{sT0+1}, s{sT0+1}, 1\ns_add_u32 s{sT0}, s{sY0}, s{sT0+1}\ns_lshl_b32 s{sT0}, s{sT0}, 9\ns_add_u32 s{sT0}, s{sT0}, s{sX0}")
    e(f"s_and_b32 s{sT0+1}, s{sWAVE}, 1\ns_lshl_b32 s{sT0+1}, s{sT0+1}, 4\ns_add_u32 s{sT0}, s{sT0}, s{sT0+1}\ns_mul_i32 s{sTILE}, s{sT0}, 192")
    for s in range(1, 4): e(f"s_add_u32 s{sTILE+s}, s{sTILE}, {8*s*ROWB}")

    e.wait(lgkm=0, vm=12); e("s_barrier")

def w1_image(e, c, st):
    e(f"v_or_b32 v232, v{WR(0,0)}, v{WR(0,0)+1}")
    regs = [WR(i,jj)+d for i in range(3) for jj in range(4) for d in range(3)][2:]
    for k in range(0, len(regs), 2): e(f"v_or3_b32 v232, v232, v{regs[k]}, v{regs[k+1]}")
    e(f"v_and_b32 v232, 0x40004000, v232\nv_and_b32 v233, 0x7fff, v{WR(0,0)}\nv_cmp_ne_u32 vcc, 0, v232\nv_mov_b32 v234, {112<<7}\nv_cmp_le_u32 s[{sT0}:{sT0+1}], v234, v233")
    e(f"s_cmp_lg_u64 vcc, 0\ns_cselect_b32 s{sT0+2}, 1, 0\ns_cmp_lg_u64 s[{sT0}:{sT0+1}], 0\ns_cselect_b32 s{sT0+3}, 2, 0\ns_or_b32 s{sT0}, s{sT0+2}, s{sT0+3}")
    e(f"s_lshl_b32 s{sT0+1}, s{sWAVE}, 2\ns_add_u32 s{sT0+1}, s{sT0+1}, {SCR_MAX}\nv_mov_b32 v232, s{sT0}\nv_mov_b32 v233, s{sT0+1}\nds_write_b32 v233, v232")
    e.label("L_scale")
    e(f"s_sub_u32 s{sNS}, 0, s{sS}\ns_mov_b32 s{sT0+6}, 0x07060302\ns_mov_b32 s{sT0+7}, 0x05040100")
    lmask = sum(1 << B for B in range(24) if c.cls[B] == 'L')
    for i in range(3):
        e(f"s_mul_i32 s{sT0}, s{sWAVE}, 3\ns_add_u32 s{sT0}, s{sT0}, {i}")
        e(f"s_lshr_b32 s{sT0+1}, s{sT0}, 3\ns_bfe_u32 s{sT0+2}, s{sT0}, 0x20001\ns_mul_i32 s{sT0+5}, s{sT0+2}, 6\ns_mul_i32 s{sT0+2}, s{sT0+2}, 18\ns_add_u32 s{sT0+1}, s{sT0+1}, s{sT0+2}")
        e(f"s_lshr_b32 s{sT0+5}, {lmask:#x}, s{sT0+5}\ns_and_b32 s{sT0+2}, s{sT0}, 1\ns_lshl_b32 s{sT0+2}, s{sT0+2}, 3")
        for el in range(6):
            e(f"s_add_u32 s{sT0+3}, s{sT0+1}, {3*el}\ns_cmp_ge_u32 s{sT0+3}, 56\ns_cselect_b32 s{sT0+4}, 16, 8")
            e(f"s_add_u32 s{sT0+3}, s{sT0+3}, s{sT0+4}\ns_lshl_b32 s{sT0+3}, s{sT0+3}, 10\ns_add_u32 s{sT0+3}, s{sT0+3}, s{sT0+2}")
            kinds = {c.cls[6*cg + el] for cg in range(4)}
            if kinds == {'L'}: ex = f"s{sNS}"
            elif kinds == {'V'}: ex = None
            else:
                e(f"s_bitcmp1_b32 s{sT0+5}, {el}\ns_cselect_b32 s{sT0+4}, s{sNS}, 0"); ex = f"s{sT0+4}"
            tp = 232 + 4*(el % 2)
            for a in range(2):
                r0 = WR(i,2*a) + el//2; r1 = WR(i,2*a+1) + el//2
                if ex is None:
                    e(f"v_perm_b32 v{tp+a}, v{r1}, v{r0}, s{sT0+6 if el % 2 else sT0+7}")
                else:
                    if el % 2: e(f"v_and_b32 v{tp+2}, 0xffff0000, v{r0}\nv_and_b32 v{tp+3}, 0xffff0000, v{r1}")
                    else: e(f"v_lshlrev_b32 v{tp+2}, 16, v{r0}\nv_lshlrev_b32 v{tp+3}, 16, v{r1}")
                    e(f"v_ldexp_f32 v{tp+2}, v{tp+2}, {ex}\nv_ldexp_f32 v{tp+3}, v{tp+3}, {ex}\nv_cvt_pk_bf16_f32 v{tp+a}, v{tp+2}, v{tp+3}")
            e(f"v_add_u32 v{240+el%2}, s{sT0+3}, v{vB0}\nds_write_b64 v{240+el%2}, {R(tp,2)}")
    st(e, 'scl')
    e.wait(lgkm=0); e("s_barrier")
    e.raw(f"s_cmp_lg_u32 s{sFLAG}, 0\ns_cbranch_scc1 L_go")
    e(f"v_mov_b32 v233, {SCR_MAX}\nds_read_b128 v[236:239], v233\nds_read_b128 v[240:243], v233 offset:16")
    e("v_or3_b32 v236, v236, v237, v238\nv_or3_b32 v236, v236, v239, v240\nv_or3_b32 v236, v236, v241, v242\nv_or_b32 v236, v236, v243")
    e(f"v_readfirstlane_b32 s{sT0}, v236\ns_nop 3\ns_cmp_eq_u32 s{sT0}, 2")
    e.raw("s_cbranch_scc1 L_go")
    SM2 = SCR_MAX + 64
    e(f"v_mov_b32 v232, 0\ns_mov_b32 s{sT0}, 0x7fff7fff")
    for i in range(3):
        for jj in range(4):
            for d in range(3):
                e(f"v_and_b32 v233, s{sT0}, v{WR(i,jj)+d}\nv_pk_max_u16 v232, v232, v233")
    e("v_lshrrev_b32 v233, 16, v232\nv_and_b32 v232, 0xffff, v232\nv_max_u32 v232, v232, v233")
    wave_reduce_dpp(e, "v_max_u32", 232)
    e(f"v_readlane_b32 s{sT0}, v232, 63\ns_lshl_b32 s{sT0+1}, s{sWAVE}, 2\ns_add_u32 s{sT0+1}, s{sT0+1}, {SM2}")
    e(f"s_nop 2\nv_mov_b32 v232, s{sT0}\nv_mov_b32 v233, s{sT0+1}\nds_write_b32 v233, v232")
    e.wait(lgkm=0); e("s_barrier")
    e(f"v_mov_b32 v233, {SM2}\nds_read_b128 v[236:239], v233\nds_read_b128 v[240:243], v233 offset:16")
    e("v_max_u32 v236, v236, v237\nv_max3_u32 v236, v236, v238, v239\nv_max3_u32 v236, v236, v240, v241\nv_max3_u32 v236, v236, v242, v243")
    e(f"v_readfirstlane_b32 s{sT0}, v236\ns_nop 3\ns_lshr_b32 s{sT0}, s{sT0}, 7\ns_max_u32 s{sT0}, s{sT0}, 23\ns_sub_u32 s{sS}, s{sT0}, 23\ns_mov_b32 s{sFLAG}, 1")
    lut_build(e, True, 208)
    e.raw("s_branch L_scale")
    e.label("L_go")
    for j in range(24): e(f"v_mov_b32 v{SUM+j}, 0")

def ticket(e, phase):
    n = 252; L = f"L_tk{phase}"
    e.raw(f"s_cmp_lg_u32 s{sWAVE}, 7\ns_cbranch_scc1 {L}")
    if phase == 0:
        e(f"s_lshl_b32 s{sT0}, s{sREP}, 2\nv_mov_b32 v{n}, 1\nv_mov_b32 v{vT}, 0\ns_mov_b64 exec, 1")
        e.raw(f"buffer_atomic_add v{n}, v{vT}, s[{sDBG}:{sDBG+3}], s{sT0} offen sc0")
        e("s_mov_b64 exec, -1")
    elif phase == 1:
        e(f"v_readfirstlane_b32 s{sTK}, v{n}\ns_nop 3\ns_cmp_lg_u32 s{sTK}, 0")
        e.raw(f"s_cbranch_scc1 {L}")
        e(f"v_mov_b32 v{n}, 0\nv_mov_b32 v{n+1}, 0\nv_mov_b32 v{n+2}, 0\nv_mul_u32_u24 v{vT}, 12, v{vLANE}")
        e(f"s_mul_i32 s{sT0}, s{sREP}, 1536\ns_add_u32 s{sT0}, s{sT0}, {WS_SUM}\ns_lshl_b32 s{sT0+1}, s{sREP}, 7\ns_add_u32 s{sT0+1}, s{sT0+1}, {WS_CNT}")
        e.raw(f"buffer_store_dwordx3 {R(n,3)}, v{vT}, s[{sWS}:{sWS+3}], s{sT0} offen sc0 sc1\nbuffer_store_dwordx3 {R(n,3)}, v{vT}, s[{sWS}:{sWS+3}], s{sT0} offen offset:768 sc0 sc1")
        e.raw(f"buffer_store_dword v{n}, v{n+1}, s[{sWS}:{sWS+3}], s{sT0+1} offen sc0 sc1")
    else:
        e.raw(f"s_cmp_lg_u32 s{sTK}, 0\ns_cbranch_scc1 {L}")
        e(f"s_lshl_b32 s{sT0}, s{sREP}, 2\nv_mov_b32 v{n}, 1\nv_mov_b32 v{vT}, 0\ns_mov_b64 exec, 1")
        e.raw(f"buffer_atomic_add v{n}, v{vT}, s[{sDBG}:{sDBG+3}], s{sT0} offen offset:64")
        e("s_mov_b64 exec, -1")
    e.label(L)
    e("s_nop 1")

def conv(e, s):
    e(f"s_lshr_b32 s{sT0}, s{sWAVE}, 1\ns_add_u32 s{sT0}, s{sT0}, {(4*s) % 5}\ns_add_u32 s{sT0+1}, s{sT0}, 1")
    for k in range(2):
        e(f"s_cmp_ge_u32 s{sT0+k}, 5\ns_cselect_b32 s{sT0+2}, 5, 0\ns_sub_u32 s{sT0+k}, s{sT0+k}, s{sT0+2}\ns_mul_i32 s{sT0+k}, s{sT0+k}, {PAIRB}")
    e(f"s_sub_u32 s{sT0+1}, s{sT0+1}, s{sT0}\ns_add_u32 s{sT0}, s{sT0}, {RING}")
    e(f"v_mul_lo_u32 v{vT}, v{vHALF}, s{sT0+1}\nv_add_u32 v{vT}, s{sT0}, v{vT}")
    for dx in range(3): e(f"v_add_u32 v{vAD+dx}, v{vT}, v{vCB+dx}")
    sc = Sched()
    order = [(b, a) for b in range(4) for a in range(3)]
    for k, (b, a) in enumerate(order):
        cb = 4*a + b; buf = CBUF + 12*(k % 3); acc = ACC1 + 4*cb
        if a == 0 and b > 0:
            for dx in range(3): sc.add(k - 2.05, f"v_xor_b32 v{vAD+dx}, {16*(b ^ (b-1))}, v{vAD+dx}")
        sc.add(k - 2, f"ds_read_b128 {R(buf+8,4)}, v{vAD+2} offset:{64*a}")
        sc.add(k - 2, f"ds_read_b128 {R(buf,4)}, v{vAD} offset:{64*a}")
        sc.add(k - 2, f"ds_read_b128 {R(buf+4,4)}, v{vAD+1} offset:{64*a}")
        sc.add(k - 0.2, f"v_mfma_f32_16x16x32_bf16 {R(acc,4)}, {R(A2+4*cb,4)}, {R(buf+8,4)}, 0")
        sc.add(k - 0.1, f"v_smfmac_f32_16x16x64_bf16 {R(acc,4)}, {R(A1+4*cb,4)}, {R(buf,8)}, v{vIDX}")
        for i in range(4):
            tt = k + 1.5 + 0.01*i
            if k == 0 and i == 0:
                sc.add(tt, f"v_mov_b32 v{S1}, v{acc}"); sc.add(tt, f"v_mul_f32 v{S2}, v{acc}, v{acc}")
            else:
                sc.add(tt, f"v_add_f32 v{S1}, v{acc+i}, v{S1}"); sc.add(tt, f"v_fmac_f32 v{S2}, v{acc+i}, v{acc+i}")
    m = e.merge; e.merge = 0
    sc.emit(e); e.merge = m

def layernorm(e, LN):
    e(f"v_permlane32_swap_b32 v{S1}, v{S2}\nv_add_f32 v{S1}, v{S1}, v{S2}\nv_mov_b32 v{S2}, v{S1}\nv_permlane32_swap_b32 v{S1}, v{S2}")
    e(f"v_mul_f32 v{S1}, {0x3c2aaaab:#x}, v{S1}\nv_mul_f32 v{S2}, {0x3c2aaaab:#x}, v{S2}\nv_fma_f32 v{S2}, -v{S1}, v{S1}, v{S2}\nv_max_f32 v{S2}, 0, v{S2}")
    e(f"v_add_f32 v{S2}, {0x3727c5ac:#x}, v{S2}\nv_rsq_f32 v{S2}, v{S2}\nv_mul_f32 v{S2}, {K_NEGK:#x}, v{S2}\nv_mul_f32 v{S1}, v{S1}, v{S2}")
    for r in range(48): e(f"v_fma_f32 v{ACC1+r}, v{ACC1+r}, v{S2}, -v{S1}")
    for t3 in range(3):
        for a in range(2):
            for z in range(2):
                cb = 4*t3 + 2*a + z
                for i in range(2): e(f"v_cvt_pk_bf16_f32 v{LN+12*z+4*t3+2*a+i}, v{ACC1+4*cb+2*i}, v{ACC1+4*cb+2*i+1}")
    for k in range(12): e(f"v_permlane16_swap_b32 v{LN+k}, v{LN+12+k}")

def wread(sl, F):
    a = fragA(F); return f"ds_read_b128 {R(sl,4)}, v{vB0 if a < 65536 else vB1} offset:{a & 65535}"

vMX = (14, 15)
def wread2(sl, blk, t):
    a, b = blk
    if a == b: return wread(sl, 3*a + t)
    return f"ds_read_b128 {R(sl,4)}, v{vMX[0] if b > a else vMX[1]} offset:{fragA(3*min(a,b) + t)}"

def gemm1(e, c, LN, extra):
    sc = Sched(); nw = 3; lead = 2; f = 0; nT = 0
    order = order1(c)
    for bi, B in enumerate(order):
        d = POOL + 8*(bi % 8); acc = SUM + B; sl = []
        for t in range(3):
            s_ = W + 4*(f % nw); f += 1; sl.append(s_)
            sc.add(bi + 2*(t - lead)/6 + 0.003, wread(s_, 3*B + t))
            for z in range(2):
                sc.add(bi + (2*t + z)/6, f"v_mfma_f32_16x16x32_bf16 {R(d+4*z,4)}, {R(LN+12*z+4*t,4)}, {R(s_,4)}, {'0' if t == 0 else R(d+4*z,4)}")
        if c.cls[B] == 'L':
            ng = [1,1,2,1,1,2]; r = d
            for k in range(6):
                ts = bi + 1 + (k+1)/6
                for _ in range(ng[k]):
                    sc.add(ts - 0.002, f"v_lshlrev_b32_sdwa v{r}, v{vONE}, v{r} {SDWA1}")
                    sc.add(ts + 0.002, f"ds_read_u16_d16_hi v{r}, v{r}")
                    sc.add(ts + 1.35, f"v_add_f32 v{acc}, v{r}, v{acc}")
                    r += 1
        else:
            n = 1
            while bi + n < 24 and c.cls[order[bi + n]] != 'V': n += 1
            span = min(n, 3) if bi + n >= 24 else n
            tt = T1 + 8*(nT % 2); nT += 1
            stages = [lambda r, t: f"v_fmaak_f32 v{t}, v{r}, v{r}, {K_A:#x}", lambda r, t: f"v_mul_f32 v{t}, v{r}, v{t}", lambda r, t: f"v_exp_f32 v{t}, v{t}",
                      lambda r, t: f"v_add_f32 v{t}, 1.0, v{t}", lambda r, t: f"v_rcp_f32 v{t}, v{t}", lambda r, t: f"v_mul_f32 v{t}, v{r}, v{t}", lambda r, t: f"v_fmac_f32 v{acc}, v{t}, v{t}"]
            wt = [1,1,2,1,2,1,1]; cum = 0
            for hh in range(2):
                for si, fn in enumerate(stages):
                    for k in range(4): sc.add(bi + 1.2 + span*(cum + wt[si]*k/4)/18, fn(d + 4*hh + k, tt + 4*hh + k))
                    cum += wt[si]
    for k, (t, g) in enumerate(extra):
        for i, l in enumerate(g): sc.add(t + 0.004 + 1e-5*i, l)
    emit_prio(sc, e, c.prio1)

def ln_mem(op, tile, base, mod=''):
    o = []
    for k in range(6):
        o.append([f"s_add_u32 s{sT0+2}, s{sLNO}, {tile*8*6144 + 1024*k}", f"buffer_{op}_dwordx4 {R(base+4*k,4)}, v{vB0}, s[{sWS}:{sWS+3}], s{sT0+2} offen{mod}"])
    return o

WR2 = 40; GBR = 88
def mixed_waves(c):
    m = [w for w in range(8) if c.mix and c.cls[3*w+1] == 'V']
    assert m == list(range(len(m))) and all(c.cls[B] == 'L' or B % 3 == 1 for B in range(24)) or not c.mix
    return len(m)
sHB = 66
def w2_loads(c):
    nm = mixed_waves(c)
    o = [[f"v_lshrrev_b32 v102, 4, v{vLANE}", f"v_mul_u32_u24 v100, 48, v102", f"v_mul_u32_u24 v102, {24*192}, v102", f"v_and_b32 v101, 15, v{vLANE}", f"v_mul_u32_u24 v101, 12, v101", f"v_add_u32 v101, v101, v102",
          f"s_mul_i32 s{sT0+5}, s{sWAVE}, 3", f"s_lshr_b32 s{sT0+4}, s{sWAVE}, 1", f"s_mul_i32 s{sT0+4}, s{sT0+4}, 90", f"s_add_u32 s{sT0+5}, s{sT0+5}, s{sT0+4}",
          f"s_cmp_lt_u32 s{sWAVE}, {nm}", f"s_cselect_b32 s{sMIX}, 1, 0"]]
    for i in range(3):
        for jj in range(4):
            pre = []
            if jj % 2 == 0:
                if i < 2 and jj == 2: pre = [f"s_xor_b32 s{sT0+3}, s{sMIX}, {i}", f"s_add_u32 s{sT0+3}, s{sT0+3}, s{sT0+5}"]
                else: pre = [f"s_add_u32 s{sT0+3}, s{sT0+5}, {i}"]
                pre += [f"s_mul_i32 s{sT0+4}, s{sT0+3}, 192", f"s_lshl_b32 s{sT0+3}, s{sT0+3}, 1"]
            o.append(pre + [f"buffer_load_dwordx3 {R(WR2+16*i+4*jj,3)}, v101, s[{sW2}:{sW2+3}], s{sT0+4} offen offset:{6*192*jj}",
                     f"buffer_load_ushort v{GBR+4*i+jj}, v100, s[{sGB}:{sGB+3}], s{sT0+3} offen offset:{12*jj}"])
    o.append([f"s_lshl_b32 s{sT0+3}, s{sREP}, 2", f"v_mov_b32 v103, 0", f"buffer_load_dword v102, v103, s[{sDBG}:{sDBG+3}], s{sT0+3} offen offset:64 sc0 sc1"])
    return o

def order1(c):
    V = [B for B in range(24) if c.cls[B] == 'V']; L = [B for B in range(24) if c.cls[B] == 'L']
    o = []; acc = c.vphase
    for k in range(24):
        acc += len(V0 := [B for B in range(24) if c.cls[B] == 'V'])
        if acc >= 24 and V: acc -= 24; o.append(V.pop(0))
        else: o.append(L.pop(0) if L else V.pop(0))
    return o

def units(c):
    if not c.mix:
        V = [B for B in range(24) if c.cls[B] == 'V']; L = [B for B in range(24) if c.cls[B] == 'L']
        M = [(B, B) for B in V]; P = [(B, B) for B in L]; big = M
    else:
        V = [B for B in range(24) if c.cls[B] == 'V']
        assert all(c.cls[B-1] == 'L' and B <= 17 for B in V)
        M = sum(([(B, B-1), (B-1, B)] for B in V), [])
        P = [(B, B) for B in range(24) if c.cls[B] == 'L' and B+1 not in V]
    U = []
    if c.mix:
        nMM = len(M) - 12 if len(M) > 12 else 0; nPP = 12 - len(M) if len(M) < 12 else 0
        acc = 6
        for u in range(12):
            acc += nMM + nPP
            if acc >= 12:
                acc -= 12; U.append((M.pop(0), M.pop(0)) if nMM else (P.pop(0), P.pop(0)))
            else: U.append((M.pop(0), P.pop(0)))
    else:
        nLL = 12 - len(M); acc = 0
        for u in range(12):
            acc += nLL
            if acc >= 12 or not M: acc -= 12; U.append((P.pop(0), P.pop(0)))
            else: U.append((M.pop(0), P.pop(0)))
    assert not M and not P
    return U

def UNP(L, o): return 16 + 6*L + o
def sync1(e, c, st):
    for k in range(0, 24, 2): e(f"v_permlane16_swap_b32 v{SUM+k}, v{SUM+k+1}")
    for k in range(0, 24, 2): e(f"v_add_f32 v{SUM+k}, v{SUM+k}, v{SUM+k+1}")
    for k in range(0, 24, 4): e(f"v_permlane32_swap_b32 v{SUM+k}, v{SUM+k+2}")
    for k in range(0, 24, 4): e(f"v_add_f32 v{SUM+k}, v{SUM+k}, v{SUM+k+2}")
    e(f"s_mul_i32 s{sT0}, s{sWAVE}, 1536\ns_add_u32 s{sT0}, s{sT0}, {RED}\nv_lshlrev_b32 v160, 2, v{vLANE}\nv_add_u32 v160, s{sT0}, v160")
    for k in range(6): e(f"ds_write_b32 v160, v{SUM+4*k} offset:{256*k}")
    e(f"s_lshl_b32 s{sT0}, s{sREP}, 2\nv_mov_b32 v161, 0\ns_mov_b32 s{sT0+1}, 0x100000")
    e(f"v_readfirstlane_b32 s{sT0+2}, v102\ns_nop 3\ns_cmp_lg_u32 s{sT0+2}, 0")
    e.raw("s_cbranch_scc1 L_flagged")
    e.label("L_flag")
    e(f"buffer_load_dword v162, v161, s[{sDBG}:{sDBG+3}], s{sT0} offen offset:64 sc0 sc1")
    e(f"v_readfirstlane_b32 s{sT0+2}, v162\ns_sub_u32 s{sT0+1}, s{sT0+1}, 1\ns_cmp_eq_u32 s{sT0+1}, 0")
    e.raw("s_cbranch_scc1 L_flagged")
    e(f"s_cmp_eq_u32 s{sT0+2}, 0")
    e.raw("s_cbranch_scc1 L_flag")
    e.label("L_flagged")
    e.wait(lgkm=0); e("s_barrier"); st(e, 'B1')
    e.raw(f"s_cmp_ge_u32 s{sWAVE}, 6\ns_cbranch_scc1 L_noat")
    e(f"v_lshlrev_b32 v160, 2, v0\nv_add_u32 v161, {RED}, v160")
    for w in range(8): e(f"ds_read_b32 v{164+w}, v161 offset:{1536*w}")
    for w in range(1, 8): e(f"v_add_f32 v164, v164, v{164+w}")
    e(f"s_mul_i32 s{sT0}, s{sREP}, 1536\ns_add_u32 s{sT0}, s{sT0}, {WS_SUM}")
    e.raw(f"buffer_atomic_add_f32 v164, v160, s[{sWS}:{sWS+3}], s{sT0} offen")
    e.label("L_noat")
    lut_build(e, False, 176); st(e, 'lut')
    for L in range(12): e(f"v_lshlrev_b32 v{GBR+L}, 16, v{GBR+L}")
    for L in range(12):
        for o in (0, 1, 2, 3, 5, 4):
            src = WR2 + 4*L + o//2
            e(f"v_and_b32 v{UNP(L,o)}, 0xffff0000, v{src}" if o % 2 else f"v_lshlrev_b32 v{UNP(L,o)}, 16, v{src}")
        for o in range(6):
            e(f"v_mul_f32 v{204+o}, v{UNP(L,o)}, v{GBR}" if L == 0 else f"v_fmac_f32 v{204+o}, v{UNP(L,o)}, v{GBR+L}")
    for k in range(0, 6, 2): e(f"v_permlane16_swap_b32 v{204+k}, v{205+k}")
    for k in range(0, 6, 2): e(f"v_add_f32 v{204+k}, v{204+k}, v{205+k}")
    e("v_mov_b32 v209, v208\nv_permlane32_swap_b32 v204, v206\nv_permlane32_swap_b32 v208, v209\nv_add_f32 v204, v204, v206\nv_add_f32 v208, v208, v209")
    e(f"v_and_b32 v200, 15, v{vLANE}\nv_mul_u32_u24 v200, 6, v200\nv_lshrrev_b32 v201, 4, v{vLANE}\nv_add_u32 v202, v200, v201\nv_and_b32 v201, 1, v201\nv_add3_u32 v203, v200, v201, 4")
    e(f"s_mul_i32 s{sT0}, s{sWAVE}, 384\ns_add_u32 s{sT0}, s{sT0}, {REDB}\nv_lshl_add_u32 v202, v202, 2, s{sT0}\nv_lshl_add_u32 v203, v203, 2, s{sT0}")
    e("ds_write_b32 v202, v204\nds_write_b32 v203, v208")
    e.wait(lgkm=0, vm=0); e("s_barrier"); st(e, 'B2')
    e.raw(f"s_cmp_lg_u32 s{sWAVE}, 0\ns_cbranch_scc1 L_nocnt")
    e(f"s_lshl_b32 s{sT0}, s{sREP}, 7\ns_add_u32 s{sT0}, s{sT0}, {WS_CNT}\nv_mov_b32 v200, 1\nv_mov_b32 v201, 0\ns_mov_b64 exec, 1")
    e.raw(f"buffer_atomic_add v200, v201, s[{sWS}:{sWS+3}], s{sT0} offen")
    e("s_mov_b64 exec, -1")
    e.label("L_nocnt")
    e.raw(f"s_cmp_lt_u32 s{sWAVE}, 6\ns_cbranch_scc1 L_nob2")
    e(f"v_subrev_u32 v200, 384, v0\nv_lshlrev_b32 v200, 2, v200\nv_add_u32 v201, {REDB}, v200")
    for w in range(8): e(f"ds_read_b32 v{204+w}, v201 offset:{384*w}")
    for w in range(1, 8): e(f"v_add_f32 v204, v204, v{204+w}")
    e(f"v_add_u32 v200, {B2F}, v200\nds_write_b32 v200, v204")
    e.label("L_nob2")
    e.wait(lgkm=0)
def setup2(c):
    class Rec:
        def __init__(self): self.l = []
        def __call__(self, t): self.l += [x for x in t.split("\n") if x]
    gs = []
    def grp(f): r = Rec(); f(r); gs.append(r.l)
    grp(lambda e: (srd(e, sOUT, sPOUT, XBYTES), srd(e, sG, sPG, 768)))
    grp(lambda e: e(f"v_add_u32 v{vB2}, 0x20000, v{vB0}\nv_lshrrev_b32 v104, 4, v{vLANE}\nv_mul_u32_u24 v104, 192, v104\nv_and_b32 v105, 15, v{vLANE}\nv_mul_u32_u24 v105, 12, v105\nv_add_u32 v{vOP}, v104, v105"))
    grp(lambda e: e(f"v_lshrrev_b32 v104, 4, v{vLANE}\ns_mul_i32 s{sT0}, s{sWAVE}, 3\ns_lshr_b32 s{sT0+1}, s{sWAVE}, 1\ns_mul_i32 s{sT0+1}, s{sT0+1}, 90\ns_add_u32 s{sT0}, s{sT0}, s{sT0+1}\nv_add_u32 v104, s{sT0}, v104\nv_and_b32 v105, 15, v{vLANE}\nv_mul_u32_u24 v105, 6, v105\nv_add_u32 v104, v104, v105\nv_lshlrev_b32 v104, 1, v104\nbuffer_load_ushort v111, v104, s[{sG}:{sG+3}], 0 offen"))
    grp(lambda e: e(f"v_bfe_u32 v104, v{vLANE}, 1, 1\nv_mul_u32_u24 v104, 3072, v104\nv_add_u32 v{vMX[0]}, v104, v{vB0}\nv_sub_u32 v104, 3072, v104\nv_add_u32 v{vMX[1]}, v104, v{vB0}"))
    grp(lambda e: e(f"v_lshlrev_b32 v7, 7, v{vLANE}\nv_lshrrev_b32 v104, 4, v{vLANE}\nv_min_u32 v104, 1, v104\nv_lshlrev_b32 v104, 31, v104\nv_or_b32 v7, v7, v104"))
    r = Rec(); image_addresses(r, c)
    n = len(r.l) // 3
    gs += [r.l[:n], r.l[n:2*n], r.l[2*n:]]
    return gs

def sum_loads(e, c):
    e(f"s_mul_i32 s{sT0}, s{sWAVE}, 192\ns_add_u32 s{sT0}, s{sT0}, {WS_SUM}\nv_lshlrev_b32 v110, 2, v{vLANE}")
    for r in range(NREP):
        e.raw(f"buffer_load_dword v{101+r}, v110, s[{sWS}:{sWS+3}], s{sT0} offen{c.sum_mod}\ns_add_u32 s{sT0}, s{sT0}, 1536")
OKW = MEANR + 64
def poll_ops():
    return [f"v_and_b32 v110, {NREP-1}, v{vLANE}", f"v_lshlrev_b32 v110, 7, v110", f"s_mov_b32 s{sT0+2}, {WS_CNT}", f"buffer_load_dword v109, v110, s[{sWS}:{sWS+3}], s{sT0+2} offen sc0 sc1"]
def early_poll(e):
    e.raw(f"s_cmp_lg_u32 s{sWAVE}, 1\ns_cbranch_scc1 L_nopoll")
    for l in poll_ops(): e.raw(l)
    e.label("L_nopoll")
def sync_early(e, c, st):
    st(e, 'pa')
    e(f"v_mov_b32 v110, {OKW}")
    e.raw(f"s_cmp_lg_u32 s{sWAVE}, 1\ns_cbranch_scc1 L_nook\ns_waitcnt vmcnt(0)")
    e(f"v_cmp_gt_u32 vcc, {256//NREP}, v109\ns_nop 4\ns_cmp_eq_u64 vcc, 0\ns_cselect_b32 s{sOK}, 1, 0\nv_mov_b32 v109, s{sOK}\nds_write_b32 v110, v109")
    e.label("L_nook")
    e.wait(lgkm=0); e("s_barrier"); st(e, 'pb')
    e(f"ds_read_b32 v109, v110")
def early_sums(c):
    o = [f"v_readfirstlane_b32 s{sOK}, v109", f"v_lshlrev_b32 v110, 2, v{vLANE}", f"s_mul_i32 s{sT0+3}, s{sWAVE}, 192", f"s_add_u32 s{sT0+3}, s{sT0+3}, {WS_SUM}", f"s_cmp_lg_u32 s{sOK}, 0", f"s_cselect_b32 s{sT0+3}, s{sT0+3}, {OOB:#x}"]
    return [o] + [[f"buffer_load_dword v{101+r}, v110, s[{sWS}:{sWS+3}], s{sT0+3} offen{c.sum_mod}", f"s_add_u32 s{sT0+3}, s{sT0+3}, 1536"] for r in range(NREP)]
def image_addresses(e, c):
    U = units(c); nm = mixed_waves(c)
    where = {blk: 2*u + H for u, p in enumerate(U) for H, blk in enumerate(p)}
    for i in range(3):
        pos = [where[(3*w+i, 3*w+(i^1 if i < 2 and w < nm else i))] for w in range(8)]
        lo = sum(pos[w] << (5*w) for w in range(4)); hi = sum(pos[w+4] << (5*w) for w in range(4))
        e(f"s_mov_b32 s{sT0+2}, {lo:#x}\ns_cmp_ge_u32 s{sWAVE}, 4\ns_cselect_b32 s{sT0+2}, {hi:#x}, s{sT0+2}\ns_and_b32 s{sT0}, s{sWAVE}, 3\ns_mul_i32 s{sT0}, s{sT0}, 5")
        e(f"s_lshr_b32 s{sT0+2}, s{sT0+2}, s{sT0}\ns_and_b32 s{sT0+1}, s{sT0+2}, 1\ns_lshl_b32 s{sT0+1}, s{sT0+1}, 3\ns_bfe_u32 s{sT0+2}, s{sT0+2}, 0x40001\ns_mul_i32 s{sT0+2}, s{sT0+2}, 6144\ns_add_u32 s{sT0+1}, s{sT0+1}, s{sT0+2}\ns_add_u32 s{(33,34,37)[i]}, s{sT0+1}, {W2L}")
def sync2(e, c, st):
    st(e, 'prew')
    e.raw(f"s_cmp_lg_u32 s{sOK}, 0\ns_cbranch_scc1 L_havesums")
    e.raw(f"s_cmp_lg_u32 s{sWAVE}, 1\ns_cbranch_scc1 L_arrived")
    e(f"s_mov_b32 s{sT0+1}, 0x100000")
    e.label("L_poll")
    for l in poll_ops(): e(l)
    e(f"v_cmp_gt_u32 vcc, {256//NREP}, v109\ns_sub_u32 s{sT0+1}, s{sT0+1}, 1\ns_cmp_eq_u32 s{sT0+1}, 0")
    e.raw("s_cbranch_scc1 L_arrived\ns_nop 4\ns_cbranch_vccnz L_poll")
    e.label("L_arrived")
    e("s_barrier")
    sum_loads(e, c)
    e.label("L_havesums")
    e.wait(vm=0); st(e, 'sld')
    for r in range(1, NREP): e(f"v_add_f32 v101, v101, v{101+r}")
    e(f"v_mov_b32 v103, {0x358637bd:#x}\nv_fmac_f32 v103, {K_INVK2:#x}, v101\nv_sqrt_f32 v103, v103")
    e(f"v_cmp_gt_u32 vcc, 48, v{vLANE}\ns_nop 1\nv_cndmask_b32 v104, 0, v103, vcc")
    wave_reduce_dpp(e, "v_add_f32", 104)
    e(f"s_lshl_b32 s{sT0+1}, s{sWAVE}, 2\ns_add_u32 s{sT0+1}, s{sT0+1}, {MEANR}\nv_mov_b32 v105, s{sT0+1}\ns_mov_b32 exec_lo, 0\ns_mov_b32 exec_hi, 0x80000000\nds_write_b32 v105, v104\ns_mov_b64 exec, -1")
    e(f"v_lshlrev_b32 v111, 16, v111\nv_mul_f32 v103, v103, v111\nv_lshrrev_b32 v104, 4, v{vLANE}\nv_lshlrev_b32 v104, 4, v104\ns_lshl_b32 s{sT0}, s{sMIX}, 6\nv_add_u32 v105, s{sT0}, v104\nv_subrev_u32 v106, s{sT0}, v104")
    for i in range(3):
        for jj in range(4):
            ad = 104 if (i == 2 or jj < 2) else (105 if i == 0 else 106)
            e(f"ds_bpermute_b32 v{GBR+4*i+jj}, v{ad}, v103 offset:{64*i+4*jj}")
    e.wait(lgkm=0); e("s_barrier"); st(e, 'B4')
    e(f"v_mov_b32 v105, {MEANR}\nds_read_b128 v[100:103], v105\nds_read_b128 v[104:107], v105 offset:16")
    e(f"v_and_b32 v110, 15, v{vLANE}\nv_mul_u32_u24 v110, 24, v110")
    for k in range(3): e(f"ds_read_b64 {R(BIAS+2*k,2)}, v110 offset:{B2F + 8*k}")
    for r in range(1, 8): e(f"v_add_f32 v100, v100, v{100+r}")
    e(f"v_mov_b32 v101, {0x358637bd:#x}\nv_fmac_f32 v101, {0x3b2aaaab:#x}, v100\nv_rcp_f32 v101, v101\nv_mov_b32 v102, {K_NINVK:#x}\nv_mul_f32 v101, v101, v102")
    for L in range(12): e(f"v_fma_f32 v{GBR+L}, v{GBR+L}, v101, v102")
    st(e, 'B5')
    for i in range(3):
        e(f"v_add_u32 v{100+i}, s{(33,34,37)[i]}, v{vB0}")
        for o in range(6):
            tp = 104 + 2*(o % 3)
            for jj in range(4): e(f"v_mul_f32 v{UNP(4*i+jj,o)}, v{UNP(4*i+jj,o)}, v{GBR+4*i+jj}")
            for a in range(2): e(f"v_cvt_pk_bf16_f32 v{tp+a}, v{UNP(4*i+2*a,o)}, v{UNP(4*i+2*a+1,o)}")
            e(f"ds_write_b64 v{100+i}, {R(tp,2)} offset:{1024*o}")
    e.wait(lgkm=0); e("s_barrier"); st(e, 'B6')

class Pass2:
    def __init__(self, c): self.c = c; self.U = units(c); self.f = 0; self.nT = 0; self.nw = 3; self.lead = 2
    NS = 48.0; NQ = 24.0
    def frag(self, sc, tm, text_fn, tmin):
        sl = W + 4*(self.f % self.nw); self.f += 1
        sc.add(max(tm - self.lead*4/self.NS + 0.0004, tmin), text_fn(sl)); return sl
    def G1(self, sc, t0, j, tmin=-99):
        for H in range(2):
            for t in range(3):
                tm = t0 + 4*(3*H + t)/self.NS; sl = self.frag(sc, tm, lambda s: wread2(s, self.U[j][H], t), tmin)
                for xz in range(4):
                    d = D + 32*(j % 2) + 8*xz + 4*H
                    sc.add(tm + xz/self.NS, f"v_mfma_f32_16x16x32_bf16 {R(d,4)}, {R(sl,4)}, {R(LN2+12*xz+4*t,4)}, {'0' if t == 0 else R(d,4)}")
    def G2(self, sc, t0, j, tmin=-99):
        for o in range(6):
            a = W2L + 6144*j + 1024*o
            tm = t0 + 4*o/self.NS; sl = self.frag(sc, tm, lambda s: f"ds_read_b128 {R(s,4)}, v{(vB0, vB1, vB2)[a >> 16]} offset:{a & 65535}", tmin)
            ct = D + 8*(o % 4) + 4
            if j == 0:
                for i in range(4): sc.add(max(tm - 3.5/self.NS, tmin), f"v_mov_b32 v{ct+i}, v{BIAS+o}")
            for xz in range(4):
                d = ACC + 24*xz + 4*o
                sc.add(tm + xz/self.NS, f"v_mfma_f32_16x16x32_bf16 {R(d,4)}, {R(D+32*(j%2)+8*xz,4)}, {R(sl,4)}, {R(ct,4) if j == 0 else R(d,4)}")
    def GELU(self, sc, t0, j):
        NQ, NS = self.NQ, self.NS
        for q in range(4):
            d = D + 32*(j % 2) + 8*q
            tq = t0 + (0.5 + (NQ - 8.0)*q/3)/NQ
            Lp = [p for p in range(4) if self.c.cls[self.U[j][p >> 1][p & 1]] == 'L']; Vp = [p for p in range(4) if p not in Lp]
            for k, p in enumerate(Lp):
                ts = round((tq + (k + 0.5)/NQ)*NS)/NS
                for z in range(2):
                    r = d + 2*p + z
                    sc.add(ts - 0.002, f"v_lshlrev_b32_sdwa v{r}, v{vONE}, v{r} {SDWA1}")
                    sc.add(ts + 0.002, f"ds_read_u16_d16{'_hi' if z else ''} v{r}, v{r}")
            els = [(d + 2*p + z) for p in Vp for z in range(2)]
            tr = []
            for r in els: tr.append(T2 + self.nT % 8); self.nT += 1
            stages = [lambda r, t: f"v_fmaak_f32 v{t}, v{r}, v{r}, {K_A:#x}", lambda r, t: f"v_mul_f32 v{t}, v{r}, v{t}", lambda r, t: f"v_exp_f32 v{t}, v{t}",
                      lambda r, t: f"v_add_f32 v{t}, 1.0, v{t}", lambda r, t: f"v_rcp_f32 v{t}, v{t}", lambda r, t: f"v_mul_f32 v{t}, v{r}, v{t}"]
            for si, f in enumerate(stages):
                for k, (r, t) in enumerate(zip(els, tr)): sc.add(tq + (0.1 + si + 0.6*k/max(len(els),1))/NQ, f(r, t))
            late = False
            for p in range(4):
                if p in Vp:
                    k = Vp.index(p); sc.add(tq + (7.2/NQ + 0.001*p if late else (6.3 + 0.1*k)/NQ), f"v_cvt_pk_bf16_f32 v{d+p}, v{tr[2*k]}, v{tr[2*k+1]}")
                else:
                    late = True; sc.add(tq + 7.2/NQ + 0.001*p, f"v_or_b32 v{d+p}, v{d+2*p}, v{d+2*p+1}")
    def rowbase(self, sc, t, tiles, xz, sreg):
        sc.add(t, f"s_add_u32 s{sreg}, s{sTILE+tiles[xz >> 1]}, {(xz & 1)*ROWB}")
    RW = [1,1,2,3,3,4,5,5,6,7,7,8,9,9,10,11]
    SL = (TMP, TMP+4, 252)
    def rtime(self, k): return self.RW[k] + (0.76 if k and self.RW[k-1] == self.RW[k] else 0.56)
    def resid_load(self, sc, tl, tiles, k):
        xz, r = k >> 2, k & 3; tmp = self.SL[k % 3]
        self.rowbase(sc, tl, tiles, xz, sT0)
        sc.add(tl, f"buffer_load_dwordx3 {R(tmp,3)}, v{vOP}, s[{sX}:{sX+3}], s{sT0} offen offset:{768*r}{self.c.x2_mod}")
    def resid(self, sc, b, tiles, k):
        xz, r = k >> 2, k & 3; tmp = self.SL[k % 3]; ta = b + self.rtime(k)
        for o in range(6):
            a = ACC + 24*xz + 4*o + r; tt = ta + 0.025*o
            sc.add(tt, f"v_and_b32 v{tmp+3}, 0xffff0000, v{tmp+o//2}" if o % 2 else f"v_lshlrev_b32 v{tmp+3}, 16, v{tmp+o//2}")
            sc.add(tt + 0.01, f"v_add_f32 v{a}, v{tmp+3}, v{a}")
        if k + 3 < 16: self.resid_load(sc, ta + 0.15, tiles, k + 3)
    def epilogue(self, sc, t0, tiles, span):
        for k in range(16):
            xz, r = k >> 2, k & 3; tmp = D + 32 + 8*(k % 4) + 4; tm = t0 + span*k/16
            for P in range(3): sc.add(tm, f"v_cvt_pk_bf16_f32 v{tmp+P}, v{ACC+24*xz+8*P+r}, v{ACC+24*xz+8*P+4+r}")
            self.rowbase(sc, tm, tiles, xz, sT0)
            sc.add(tm, f"buffer_store_dwordx3 {R(tmp,3)}, v{vOP}, s[{sOUT}:{sOUT+3}], s{sT0} offen offset:{768*r}{self.c.st_mod}")
    def pre(self, e, st):
        sc = Sched()
        for k in range(3): self.resid_load(sc, 0.1*k, (3, 2), k)
        self.G1(sc, -0.5, 0); self.G1(sc, 0.5, 1); self.GELU(sc, 0, 0)
        late = [o for o in sc.ops if o[0] >= self.c.tpoll]; full = list(sc.ops)
        sc.check(sorted(full, key=lambda o: (o[0], o[1]))); nm = 0
        if self.c.prio2: e("s_setprio 3")
        for o in sorted(full, key=lambda o: (o[0], o[1])):
            if late and o is min(late, key=lambda o: (o[0], o[1])): early_poll(e); late = None
            e(o[2])
            if o[2].startswith('v_mfma'):
                nm += 1
                if self.c.prio2 and nm % 12 == 0: e(f"s_setprio {3 - (nm // 12) % 4}")
        e("s_setprio 0")
        sc.ops = []
        sync_early(e, self.c, st)
        self.GELU(sc, 1, 1)
        for k, g in enumerate(early_sums(self.c)):
            for l in g: sc.add(1.08 + 0.05*k, l)
        emit_prio(sc, e, 0)
    def main(self, e, st):
        sc = Sched()
        for pair in range(2):
            b = 13*pair; tiles = (3, 2) if pair == 0 else (0, 1)
            if pair == 1:
                self.G1(sc, b - 0.5, 0)
                self.epilogue(sc, b - 0.45, (3, 2), self.c.espan)
                self.G1(sc, b + 0.5, 1)
                for k in range(3): self.resid_load(sc, b - 0.6 + 0.3*k, tiles, k)
            for j in range(12):
                st(e, f'p{pair}j{j}', sc, b + j)
                if j == 11: st(e, f'p{pair}j12', sc, b + 12); st(e, f'p{pair}j12h', sc, b + 12.5)
                if pair == 1 or j >= 2: self.GELU(sc, b + j, j)
                if pair == 0 and self.c.pf and self.c.pf <= j < self.c.pf + 6:
                    k = j - self.c.pf
                    sc.add(b + j + 0.93, f"s_add_u32 s{sT0+2}, s{sLNO}, {(k // 3)*8*6144 + 2048*(k % 3)}")
                    sc.add(b + j + 0.93, f"buffer_load_dword v0, v7, s[{sWS}:{sWS+3}], s{sT0+2} offen")
                if j == 10 and pair == 0:
                    for k, g in enumerate(ln_mem("load", 0, LN2) + ln_mem("load", 1, LN2+24)):
                        for l in g: sc.add(b + 11.003 + 0.04*k, l)
                self.G2(sc, b + j + 1, j, tmin=0.9)
                for k in range(16):
                    if self.RW[k] == j + 1: self.resid(sc, b, tiles, k)
                if j + 2 < 12: self.G1(sc, b + j + 1.5, j + 2)
        st(e, 'epi', sc, 25.5)
        self.epilogue(sc, 25.52, (0, 1), 0.3)
        emit_prio(sc, e, self.c.prio2)

def kernel(name, c):
    e = Emit(); e.merge = 0
    XMOD[0] = c.x_mod
    st = Stamps(c.stamp)
    st(e, 'rt0', real=True); st(e, 'entry')
    prologue(e, c, st)
    for s in range(4):
        if s: e.wait(lgkm=0, vm=0); e("s_barrier")
        st(e, f'go{s}')
        if s in (1, 2): ticket(e, s)
        conv(e, s)
        if s == 0: st(e, 'conv0'); w1_image(e, c, st); ticket(e, 0)
        else: e("s_barrier")
        LN = LNA if s < 3 else LN2
        layernorm(e, LN)
        extra = []
        if s < 3:
            g = sum((dma_ops(t) for t in range(4*s+5, 4*s+9)), [])
            extra += [(0.5 + c.dsp*k, x) for k, x in enumerate(g)]
        if s < 2 and not c.nospill: extra += [(c.sp0 + c.ssp*k, x) for k, x in enumerate(ln_mem("store", s, LN, c.sp_mod))]
        if s == 3:
            extra += [(1.0 + 1.5*k, x) for k, x in enumerate(w2_loads(c))]
            extra += [(1.7 + 1.5*k, x) for k, x in enumerate(setup2(c))]
        st(e, f'ln{s}')
        e.merge = c.merge
        gemm1(e, c, LN, extra)
        e.merge = 0
        st(e, f'gemm{s}')
    sync1(e, c, st)
    p = Pass2(c)
    e.merge = c.merge
    st(e, 'p0'); p.pre(e, st)
    e.merge = 0
    sync2(e, c, st)
    e.merge = c.merge
    p.main(e, st)
    st(e, 'end'); st(e, 'rt1', real=True)
    if c.dbg is not None: st.flush_dbg(e, sDBG, sWAVE, c.dbg)
    else: st.flush(e, sWS, sWAVE, 0)
    e.label("L_end")
    e.raw("s_endpgm")
    return khead(name) + e.text() + "\n" + kdesc(name), st.names

if __name__ == '__main__':
    import sys
    HEADER = open('standalone__modern_conv_block_slak__vision.s.ref').read().split('; Override launch')[0]
    out = sys.argv[1] if len(sys.argv) > 1 else 'standalone__modern_conv_block_slak__vision.s'
    c = Cfg()
    for k, v in eval('dict(' + (sys.argv[2] if len(sys.argv) > 2 else '') + ')').items(): setattr(c, k, v)
    body, names = kernel('standalone__modern_conv_block_slak__vision_kernel', c)
    s = HEADER + "; @launch grid=(256,1,1) block=(512,1,1) lds=163840\n" + '.amdgcn_target "amdgcn-amd-amdhsa--gfx950"\n.text\n' + body
    if c.stamp: s += f'; STAMPS {names!r}\n'
    open(out, 'w').write(s)
```

```python
from asm import *
from common import *
RING = 90112; PAIRB = 13312; ROWL = 6656
SCR = RING + 5 * PAIRB
SCR_DW = SCR; SCR_MAX = SCR + 2048; SCR_DUMMY = SCR + 3072
W2L = RING
RED = RING; REDB = RING + 12288; B2F = 8192 - 512; MEANR = 65536 + 8192 - 512
WS_SUM = 0x3000000; WS_CNT = WS_SUM + NREP * 1536
S0 = 104
def fragA(F): return 8192 + 1024 * F if F < 56 else 73728 + 1024 * (F - 56)
vLANE = 1; vB0 = 2; vB1 = 3; vOFA = 4; vOFB = 5; vONE = 6; vIDX = 7; vCB = 8; vAD = 11; vHALF = 14; vT = 15
SUM = 16; A1 = 40; A2 = 88; LNA = 136
ACC1 = 160; CBUF = 208; S1, S2 = 244, 245
POOL = 160; T1 = 224; W = 240
vB2 = 4; vOP = 5; BIAS = 8
ACC = 16; LN2 = 112; D = 160; T2 = 224; TMP = 232; CT = (252, 232)
sX = 4; sWS = 8; sW1 = 12; sDW = 16; sW2 = 20; sGB = 24; sDBG = 28; sOUT = 12; sG = 16
sWAVE = 32; sX0 = 33; sY0 = 34; sS = 35; sNS = 36; sDMA = 37; sLNO = 38; sMB = 39; sMA = 40; sREP = 41; sTK = 42; sFLAG = 43; sMIX = 39; sOK = 40; sWA = 33; sT0 = 44
sPG = 56; sPOUT = 60
sTILE = 52

def emit_prio(sc, e, n):
    if not n: return sc.emit(e)
    order = sorted(sc.ops, key=lambda o: (o[0], o[1])); sc.check(order)
    m = 0; k = 0
    e("s_setprio 3")
    for (_, _, text) in order:
        e(text)
        if text.startswith('v_mfma'):
            m += 1
            if m % n == 0: k += 1; e(f"s_setprio {3 - k % 4}")
    e("s_setprio 0"); sc.ops = []

class Cfg:
    prio1 = 12; prio2 = 12
    cls = "LVLLVL" * 3 + "LLLLLL"
    merge = 12
    prio = 0
    stamp = False
    st_mod = ""
    remap = False
    dbg = None
    aslist = False
    diag_pad = 0
    tpoll = 0.55
    sum_mod = ' sc0 sc1'
    mix = True
    vphase = 0
    nospill = False
    sp0 = 13.0
    ssp = 1.5
    sp_mod = ''
    x_mod = ''
    dsp = 1.5
    pf = 4
    x2_mod = ''
    espan = 1.18

XMOD = ['']
def dma_ops(t, first=False, offA=vOFA, offB=vOFB):
    slot = (t % 5) * PAIRB + RING
    so = "0" if first else f"s{sT0}"
    pre = [] if first else [f"s_add_u32 s{sT0}, s{sDMA}, {2*t*ROWB}"]
    ga = pre + [f"s_add_u32 m0, s{sMA}, {slot}", "s_nop 0", f"buffer_load_dwordx4 v{offA}, s[{sX}:{sX+3}], {so} offen{XMOD[0]} lds"]
    gb = pre + [f"s_add_u32 s{sT0+1}, s{sMB}, {slot}", f"s_cmp_lt_u32 s{sWAVE}, 5", f"s_cselect_b32 m0, s{sT0+1}, {SCR_DUMMY}", "s_nop 0",
                f"buffer_load_dwordx4 v{offB}, s[{sX}:{sX+3}], {so} offen{XMOD[0]} lds"]
    return [ga, gb]

def lut_build(e, square, base):
    b = base
    e(f"v_lshlrev_b32 v{b+1}, 19, v0\nv_or_b32 v{b+1}, 0x8000, v{b+1}\nv_lshlrev_b32 v{b}, 4, v0\nv_add_u32 v{b+2}, 0x10000, v{b}")
    X = b + 4; Y = b + 8; O = b + 12
    for q in range(0, 8, 4):
        for z in range(4): e(f"v_add_u32 v{X+z}, {(q+z)<<16:#x}, v{b+1}")
        for z in range(4): e(f"v_ldexp_f32 v{X+z}, v{X+z}, s{sS}")
        for z in range(4): e(f"v_fmaak_f32 v{Y+z}, v{X+z}, v{X+z}, {K_A:#x}")
        for z in range(4): e(f"v_mul_f32 v{Y+z}, v{X+z}, v{Y+z}")
        for z in range(4): e(f"v_exp_f32 v{Y+z}, v{Y+z}")
        for z in range(4): e(f"v_add_f32 v{Y+z}, 1.0, v{Y+z}")
        for z in range(4): e(f"v_rcp_f32 v{Y+z}, v{Y+z}")
        for z in range(4): e(f"v_mul_f32 v{Y+z}, v{X+z}, v{Y+z}")
        for z in range(4): e(f"v_sub_f32 v{X+z}, v{Y+z}, v{X+z}")
        if square:
            for z in range(8): e(f"v_mul_f32 v{X+z}, v{X+z}, v{X+z}")
        e(f"v_cvt_pk_bf16_f32 v{O+q//2}, v{Y}, v{Y+1}\nv_cvt_pk_bf16_f32 v{O+1+q//2}, v{Y+2}, v{Y+3}")
        e(f"v_cvt_pk_bf16_f32 v{O+4+q//2}, v{X}, v{X+1}\nv_cvt_pk_bf16_f32 v{O+5+q//2}, v{X+2}, v{X+3}")
    e(f"ds_write_b128 v{b}, {R(O,4)}\nds_write_b128 v{b+2}, {R(O+4,4)}")

def WR(i, jj):
    L = 4*i + jj
    return SUM + 4*L if L < 6 else LNA + 4*(L - 6)

def prologue(e, c, st):
    e("s_cmp_ge_u32 s2, 256"); e.raw("s_cbranch_scc1 L_end")
    e("s_load_dwordx16 s[48:63], s[0:1], 0\ns_load_dwordx2 s[64:65], s[0:1], 64")
    e(f"v_and_b32 v{vLANE}, 63, v0\nv_lshrrev_b32 v{vT}, 6, v0\nv_lshlrev_b32 v{vB0}, 4, v{vLANE}")
    e(f"v_readfirstlane_b32 s{sWAVE}, v{vT}")
    e(f"v_add_u32 v{vB1}, 0x10000, v{vB0}\nv_mov_b32 v{vONE}, 1\nv_lshrrev_b32 v{vHALF}, 5, v{vLANE}")
    if c.remap:
        e(f"s_and_b32 s{sT0}, s2, 7\ns_lshl_b32 s{sT0}, s{sT0}, 5\ns_lshr_b32 s{sT0+1}, s2, 3\ns_add_u32 s3, s{sT0}, s{sT0+1}")
    else: e("s_mov_b32 s3, s2")
    e(f"s_and_b32 s{sX0}, s3, 15\ns_lshl_b32 s{sX0}, s{sX0}, 5\ns_lshr_b32 s{sY0}, s3, 4\ns_lshl_b32 s{sY0}, s{sY0}, 5")
    e(f"s_and_b32 s{sREP}, s2, {NREP-1}\ns_mov_b32 s{sS}, {S0}\ns_mov_b32 s{sFLAG}, 0")
    e(f"s_lshl_b32 s{sMA}, s{sWAVE}, 10\ns_add_u32 s{sMB}, s{sMA}, 8192")
    e(f"s_lshl_b32 s{sT0}, s{sY0}, 9\ns_add_u32 s{sT0}, s{sT0}, s{sX0}\ns_sub_u32 s{sT0}, s{sT0}, 513\ns_mul_i32 s{sDMA}, s{sT0}, 192")
    for (off, add, o0) in ((vOFA, 0, 24), (vOFB, 512, 25)):
        e(f"s_lshl_b32 s{sT0}, s{sWAVE}, 6\ns_add_u32 s{sT0}, s{sT0}, {add}")
        e(f"v_add_u32 v17, s{sT0}, v{vLANE}")
        e(f"v_cmp_le_u32 vcc, 416, v17\ns_nop 1\nv_cndmask_b32 v18, 0, 1, vcc")
        e(f"v_mul_u32_u24 v19, 416, v18\nv_sub_u32 v19, v17, v19")
        e(f"v_mul_u32_u24 v20, 5462, v19\nv_lshrrev_b32 v20, 16, v20")
        e(f"v_mul_u32_u24 v21, 12, v20\nv_sub_u32 v21, v19, v21")
        e(f"v_bfe_u32 v22, v20, 2, 2\nv_xor_b32 v21, v21, v22")
        e(f"v_lshl_add_u32 v22, v18, 9, v20\nv_mul_u32_u24 v22, 192, v22\nv_lshl_add_u32 v22, v21, 4, v22")
        e(f"v_add_u32 v23, s{sX0}, v20\nv_subrev_u32 v23, 1, v23\nv_mov_b32 v21, {OOB:#x}")
        e(f"v_cmp_gt_u32 vcc, 512, v23\nv_cmp_gt_u32 s[{sT0}:{sT0+1}], 34, v20\ns_and_b64 vcc, vcc, s[{sT0}:{sT0+1}]")
        e(f"v_cmp_gt_u32 s[{sT0}:{sT0+1}], v17, v{vONE}\nv_mov_b32 v26, 832\nv_cmp_gt_u32 s[{sT0}:{sT0+1}], v26, v17\ns_and_b64 vcc, vcc, s[{sT0}:{sT0+1}]\ns_nop 1\nv_cndmask_b32 v{off}, v21, v22, vcc")
        e(f"v_add_u32 v22, s{sDMA}, v22\nv_add_u32 v23, s{sY0}, v18\nv_cmp_lt_u32 s[{sT0}:{sT0+1}], 0, v23\ns_and_b64 vcc, vcc, s[{sT0}:{sT0+1}]\ns_nop 1\nv_cndmask_b32 v{o0}, v21, v22, vcc")
    e.raw("s_waitcnt lgkmcnt(0)")
    srd(e, sX, 48, XBYTES); srd(e, sDW, 50, 1728)
    e(f"s_and_b32 s{sT0}, s{sWAVE}, 1\ns_lshl_b32 s{sT0}, s{sT0}, 10\ns_add_u32 m0, s{sT0}, {SCR_DW}\ns_nop 0\nbuffer_load_dwordx4 v{vB0}, s[{sDW}:{sDW+3}], s{sT0} offen lds")
    for g in dma_ops(0, True, 24, 25) + sum((dma_ops(t) for t in range(1, 5)), []):
        for l in g: e(l)
    st(e, 'xiss')
    srd(e, sW1, 52, 73728); srd(e, sW2, 54, 73728); srd(e, sGB, 58, 768); srd(e, sDBG, 62, 256); srd(e, sWS, 64, WSBYTES)
    lut_build(e, True, 208)
    e(f"v_and_b32 v17, 3, v{vLANE}\nv_bfe_u32 v18, v{vLANE}, 2, 2\nv_lshl_add_u32 v17, v17, 2, v18\nv_bfe_u32 v18, v{vLANE}, 4, 1")
    e(f"s_and_b32 s{sT0}, s{sWAVE}, 1\ns_lshl_b32 s{sT0}, s{sT0}, 4")
    for dx in range(3):
        e(f"v_add_u32 v19, s{sT0}, v17\nv_add_u32 v19, {dx}, v19")
        e(f"v_bfe_u32 v20, v19, 2, 2\nv_lshlrev_b32 v20, 4, v20\nv_mul_u32_u24 v19, 192, v19\nv_add_u32 v19, v19, v20")
        e(f"v_mul_u32_u24 v20, {ROWL}, v18\nv_add_u32 v{vCB+dx}, v19, v20")
    e(f"v_bfe_u32 v232, v{vLANE}, 2, 1\nv_bfe_u32 v233, v{vLANE}, 3, 1\nv_and_b32 v234, 3, v{vLANE}\nv_lshl_add_u32 v235, v233, 2, v234\nv_lshrrev_b32 v236, 4, v{vLANE}")
    def waddr(dst, dyreg, dxexpr):
        e(f"v_mul_u32_u24 v237, 3, v{dyreg}\nv_add_u32 v237, {dxexpr}, v237\nv_mul_u32_u24 v237, 96, v237\nv_add_u32 v237, v237, v235")
        e(f"v_lshlrev_b32 v237, 1, v237\nv_add_u32 v237, {SCR_DW}, v237\nv_mov_b32 v238, {SCR_DW+1792}")
        e(f"v_cmp_gt_u32 vcc, 3, v{dyreg}\ns_nop 1\nv_cndmask_b32 v{dst}, v238, v237, vcc")
    e(f"v_and_b32 v239, 1, v236\nv_lshlrev_b32 v239, 1, v239\nv_sub_u32 v239, v239, v232")
    waddr(240, 239, f"v{vHALF}")
    e("v_add_u32 v239, 1, v239"); waddr(241, 239, f"v{vHALF}")
    e("v_sub_u32 v239, v236, v232"); waddr(242, 239, "2")
    e(f"v_xor_b32 v237, 1, v234\nv_lshl_or_b32 v237, v237, 2, v234\nv_mul_u32_u24 v{vIDX}, 0x1111, v237")
    e(f"v_subrev_u32 v243, 1, v233\nv_not_b32 v244, v243")
    e(f"v_and_b32 v245, 1, v235\nv_lshlrev_b32 v245, 4, v245\nv_lshrrev_b32 v237, 1, v235")
    for r in range(4):
        e(f"v_cmp_eq_u32 vcc, {r}, v237\ns_nop 1\nv_cndmask_b32 v{246+r}, 0, -1, vcc")
    e.wait(vm=10); e("s_barrier")
    e(f"v_and_b32 v250, 15, v{vLANE}\nv_mul_u32_u24 v250, 12, v250\nv_bfe_u32 v251, v{vLANE}, 4, 1\nv_lshlrev_b32 v251, 1, v251\nv_add_u32 v251, v251, v{vHALF}\nv_mul_u32_u24 v251, {4*768}, v251\nv_add_u32 v250, v250, v251")
    for i in range(3):
        e(f"s_mul_i32 s{sT0}, s{sWAVE}, 3\ns_add_u32 s{sT0}, s{sT0}, {i}")
        e(f"s_lshr_b32 s{sT0+1}, s{sT0}, 3\ns_mul_i32 s{sT0+1}, s{sT0+1}, {32*768}")
        e(f"s_and_b32 s{sT0+2}, s{sT0}, 1\ns_mul_i32 s{sT0+2}, s{sT0+2}, {16*768}\ns_add_u32 s{sT0+1}, s{sT0+1}, s{sT0+2}")
        e(f"s_bfe_u32 s{sT0+2}, s{sT0}, 0x20001\ns_mul_i32 s{sT0+2}, s{sT0+2}, 192\ns_add_u32 s{sT0+1}, s{sT0+1}, s{sT0+2}")
        for jj in range(4):
            e(f"buffer_load_dwordx3 {R(WR(i,jj), 3)}, v250, s[{sW1}:{sW1+3}], s{sT0+1} offen offset:{768*jj}")
    st(e, 'wiss')
    for cb in range(12):
        e(f"ds_read_u16 v{A1+4*cb}, v240 offset:{16*cb}\nds_read_u16 v{A1+4*cb+2}, v241 offset:{16*cb}\nds_read_u16 v{A2+4*cb}, v242 offset:{16*cb}")
    for cb in range(12):
        a = A1 + 4*cb; b = A2 + 4*cb
        e(f"v_and_b32 v{a+1}, v244, v{a}\nv_and_b32 v{a}, v243, v{a}\nv_and_b32 v{a+3}, v244, v{a+2}\nv_and_b32 v{a+2}, v243, v{a+2}")
        e(f"v_lshlrev_b32 v{b}, v245, v{b}\nv_and_b32 v{b+1}, v247, v{b}\nv_and_b32 v{b+2}, v248, v{b}\nv_and_b32 v{b+3}, v249, v{b}\nv_and_b32 v{b}, v246, v{b}")
    st(e, 'cvA')
    e(f"s_lshl_b32 s{sLNO}, s2, 4\ns_add_u32 s{sLNO}, s{sLNO}, s{sWAVE}\ns_mul_i32 s{sLNO}, s{sLNO}, 6144")
    e(f"s_lshr_b32 s{sT0+1}, s{sWAVE}, 1\ns_lshl_b32 s{sT0+1}, s{sT0+1}, 1\ns_add_u32 s{sT0}, s{sY0}, s{sT0+1}\ns_lshl_b32 s{sT0}, s{sT0}, 9\ns_add_u32 s{sT0}, s{sT0}, s{sX0}")
    e(f"s_and_b32 s{sT0+1}, s{sWAVE}, 1\ns_lshl_b32 s{sT0+1}, s{sT0+1}, 4\ns_add_u32 s{sT0}, s{sT0}, s{sT0+1}\ns_mul_i32 s{sTILE}, s{sT0}, 192")
    for s in range(1, 4): e(f"s_add_u32 s{sTILE+s}, s{sTILE}, {8*s*ROWB}")

    e.wait(lgkm=0, vm=12); e("s_barrier")

def w1_image(e, c, st):
    e(f"v_or_b32 v232, v{WR(0,0)}, v{WR(0,0)+1}")
    regs = [WR(i,jj)+d for i in range(3) for jj in range(4) for d in range(3)][2:]
    for k in range(0, len(regs), 2): e(f"v_or3_b32 v232, v232, v{regs[k]}, v{regs[k+1]}")
    e(f"v_and_b32 v232, 0x40004000, v232\nv_and_b32 v233, 0x7fff, v{WR(0,0)}\nv_cmp_ne_u32 vcc, 0, v232\nv_mov_b32 v234, {112<<7}\nv_cmp_le_u32 s[{sT0}:{sT0+1}], v234, v233")
    e(f"s_cmp_lg_u64 vcc, 0\ns_cselect_b32 s{sT0+2}, 1, 0\ns_cmp_lg_u64 s[{sT0}:{sT0+1}], 0\ns_cselect_b32 s{sT0+3}, 2, 0\ns_or_b32 s{sT0}, s{sT0+2}, s{sT0+3}")
    e(f"s_lshl_b32 s{sT0+1}, s{sWAVE}, 2\ns_add_u32 s{sT0+1}, s{sT0+1}, {SCR_MAX}\nv_mov_b32 v232, s{sT0}\nv_mov_b32 v233, s{sT0+1}\nds_write_b32 v233, v232")
    e.label("L_scale")
    e(f"s_sub_u32 s{sNS}, 0, s{sS}\ns_mov_b32 s{sT0+6}, 0x07060302\ns_mov_b32 s{sT0+7}, 0x05040100")
    lmask = sum(1 << B for B in range(24) if c.cls[B] == 'L')
    for i in range(3):
        e(f"s_mul_i32 s{sT0}, s{sWAVE}, 3\ns_add_u32 s{sT0}, s{sT0}, {i}")
        e(f"s_lshr_b32 s{sT0+1}, s{sT0}, 3\ns_bfe_u32 s{sT0+2}, s{sT0}, 0x20001\ns_mul_i32 s{sT0+5}, s{sT0+2}, 6\ns_mul_i32 s{sT0+2}, s{sT0+2}, 18\ns_add_u32 s{sT0+1}, s{sT0+1}, s{sT0+2}")
        e(f"s_lshr_b32 s{sT0+5}, {lmask:#x}, s{sT0+5}\ns_and_b32 s{sT0+2}, s{sT0}, 1\ns_lshl_b32 s{sT0+2}, s{sT0+2}, 3")
        for el in range(6):
            e(f"s_add_u32 s{sT0+3}, s{sT0+1}, {3*el}\ns_cmp_ge_u32 s{sT0+3}, 56\ns_cselect_b32 s{sT0+4}, 16, 8")
            e(f"s_add_u32 s{sT0+3}, s{sT0+3}, s{sT0+4}\ns_lshl_b32 s{sT0+3}, s{sT0+3}, 10\ns_add_u32 s{sT0+3}, s{sT0+3}, s{sT0+2}")
            kinds = {c.cls[6*cg + el] for cg in range(4)}
            if kinds == {'L'}: ex = f"s{sNS}"
            elif kinds == {'V'}: ex = None
            else:
                e(f"s_bitcmp1_b32 s{sT0+5}, {el}\ns_cselect_b32 s{sT0+4}, s{sNS}, 0"); ex = f"s{sT0+4}"
            tp = 232 + 4*(el % 2)
            for a in range(2):
                r0 = WR(i,2*a) + el//2; r1 = WR(i,2*a+1) + el//2
                if ex is None:
                    e(f"v_perm_b32 v{tp+a}, v{r1}, v{r0}, s{sT0+6 if el % 2 else sT0+7}")
                else:
                    if el % 2: e(f"v_and_b32 v{tp+2}, 0xffff0000, v{r0}\nv_and_b32 v{tp+3}, 0xffff0000, v{r1}")
                    else: e(f"v_lshlrev_b32 v{tp+2}, 16, v{r0}\nv_lshlrev_b32 v{tp+3}, 16, v{r1}")
                    e(f"v_ldexp_f32 v{tp+2}, v{tp+2}, {ex}\nv_ldexp_f32 v{tp+3}, v{tp+3}, {ex}\nv_cvt_pk_bf16_f32 v{tp+a}, v{tp+2}, v{tp+3}")
            e(f"v_add_u32 v{240+el%2}, s{sT0+3}, v{vB0}\nds_write_b64 v{240+el%2}, {R(tp,2)}")
    st(e, 'scl')
    e.wait(lgkm=0); e("s_barrier")
    e.raw(f"s_cmp_lg_u32 s{sFLAG}, 0\ns_cbranch_scc1 L_go")
    e(f"v_mov_b32 v233, {SCR_MAX}\nds_read_b128 v[236:239], v233\nds_read_b128 v[240:243], v233 offset:16")
    e("v_or3_b32 v236, v236, v237, v238\nv_or3_b32 v236, v236, v239, v240\nv_or3_b32 v236, v236, v241, v242\nv_or_b32 v236, v236, v243")
    e(f"v_readfirstlane_b32 s{sT0}, v236\ns_nop 3\ns_cmp_eq_u32 s{sT0}, 2")
    e.raw("s_cbranch_scc1 L_go")
    SM2 = SCR_MAX + 64
    e(f"v_mov_b32 v232, 0\ns_mov_b32 s{sT0}, 0x7fff7fff")
    for i in range(3):
        for jj in range(4):
            for d in range(3):
                e(f"v_and_b32 v233, s{sT0}, v{WR(i,jj)+d}\nv_pk_max_u16 v232, v232, v233")
    e("v_lshrrev_b32 v233, 16, v232\nv_and_b32 v232, 0xffff, v232\nv_max_u32 v232, v232, v233")
    wave_reduce_dpp(e, "v_max_u32", 232)
    e(f"v_readlane_b32 s{sT0}, v232, 63\ns_lshl_b32 s{sT0+1}, s{sWAVE}, 2\ns_add_u32 s{sT0+1}, s{sT0+1}, {SM2}")
    e(f"s_nop 2\nv_mov_b32 v232, s{sT0}\nv_mov_b32 v233, s{sT0+1}\nds_write_b32 v233, v232")
    e.wait(lgkm=0); e("s_barrier")
    e(f"v_mov_b32 v233, {SM2}\nds_read_b128 v[236:239], v233\nds_read_b128 v[240:243], v233 offset:16")
    e("v_max_u32 v236, v236, v237\nv_max3_u32 v236, v236, v238, v239\nv_max3_u32 v236, v236, v240, v241\nv_max3_u32 v236, v236, v242, v243")
    e(f"v_readfirstlane_b32 s{sT0}, v236\ns_nop 3\ns_lshr_b32 s{sT0}, s{sT0}, 7\ns_max_u32 s{sT0}, s{sT0}, 23\ns_sub_u32 s{sS}, s{sT0}, 23\ns_mov_b32 s{sFLAG}, 1")
    lut_build(e, True, 208)
    e.raw("s_branch L_scale")
    e.label("L_go")
    for j in range(24): e(f"v_mov_b32 v{SUM+j}, 0")

def ticket(e, phase):
    n = 252; L = f"L_tk{phase}"
    e.raw(f"s_cmp_lg_u32 s{sWAVE}, 7\ns_cbranch_scc1 {L}")
    if phase == 0:
        e(f"s_lshl_b32 s{sT0}, s{sREP}, 2\nv_mov_b32 v{n}, 1\nv_mov_b32 v{vT}, 0\ns_mov_b64 exec, 1")
        e.raw(f"buffer_atomic_add v{n}, v{vT}, s[{sDBG}:{sDBG+3}], s{sT0} offen sc0")
        e("s_mov_b64 exec, -1")
    elif phase == 1:
        e(f"v_readfirstlane_b32 s{sTK}, v{n}\ns_nop 3\ns_cmp_lg_u32 s{sTK}, 0")
        e.raw(f"s_cbranch_scc1 {L}")
        e(f"v_mov_b32 v{n}, 0\nv_mov_b32 v{n+1}, 0\nv_mov_b32 v{n+2}, 0\nv_mul_u32_u24 v{vT}, 12, v{vLANE}")
        e(f"s_mul_i32 s{sT0}, s{sREP}, 1536\ns_add_u32 s{sT0}, s{sT0}, {WS_SUM}\ns_lshl_b32 s{sT0+1}, s{sREP}, 7\ns_add_u32 s{sT0+1}, s{sT0+1}, {WS_CNT}")
        e.raw(f"buffer_store_dwordx3 {R(n,3)}, v{vT}, s[{sWS}:{sWS+3}], s{sT0} offen sc0 sc1\nbuffer_store_dwordx3 {R(n,3)}, v{vT}, s[{sWS}:{sWS+3}], s{sT0} offen offset:768 sc0 sc1")
        e.raw(f"buffer_store_dword v{n}, v{n+1}, s[{sWS}:{sWS+3}], s{sT0+1} offen sc0 sc1")
    else:
        e.raw(f"s_cmp_lg_u32 s{sTK}, 0\ns_cbranch_scc1 {L}")
        e(f"s_lshl_b32 s{sT0}, s{sREP}, 2\nv_mov_b32 v{n}, 1\nv_mov_b32 v{vT}, 0\ns_mov_b64 exec, 1")
        e.raw(f"buffer_atomic_add v{n}, v{vT}, s[{sDBG}:{sDBG+3}], s{sT0} offen offset:64")
        e("s_mov_b64 exec, -1")
    e.label(L)
    e("s_nop 1")

def conv(e, s):
    e(f"s_lshr_b32 s{sT0}, s{sWAVE}, 1\ns_add_u32 s{sT0}, s{sT0}, {(4*s) % 5}\ns_add_u32 s{sT0+1}, s{sT0}, 1")
    for k in range(2):
        e(f"s_cmp_ge_u32 s{sT0+k}, 5\ns_cselect_b32 s{sT0+2}, 5, 0\ns_sub_u32 s{sT0+k}, s{sT0+k}, s{sT0+2}\ns_mul_i32 s{sT0+k}, s{sT0+k}, {PAIRB}")
    e(f"s_sub_u32 s{sT0+1}, s{sT0+1}, s{sT0}\ns_add_u32 s{sT0}, s{sT0}, {RING}")
    e(f"v_mul_lo_u32 v{vT}, v{vHALF}, s{sT0+1}\nv_add_u32 v{vT}, s{sT0}, v{vT}")
    for dx in range(3): e(f"v_add_u32 v{vAD+dx}, v{vT}, v{vCB+dx}")
    sc = Sched()
    order = [(b, a) for b in range(4) for a in range(3)]
    for k, (b, a) in enumerate(order):
        cb = 4*a + b; buf = CBUF + 12*(k % 3); acc = ACC1 + 4*cb
        if a == 0 and b > 0:
            for dx in range(3): sc.add(k - 2.05, f"v_xor_b32 v{vAD+dx}, {16*(b ^ (b-1))}, v{vAD+dx}")
        sc.add(k - 2, f"ds_read_b128 {R(buf+8,4)}, v{vAD+2} offset:{64*a}")
        sc.add(k - 2, f"ds_read_b128 {R(buf,4)}, v{vAD} offset:{64*a}")
        sc.add(k - 2, f"ds_read_b128 {R(buf+4,4)}, v{vAD+1} offset:{64*a}")
        sc.add(k - 0.2, f"v_mfma_f32_16x16x32_bf16 {R(acc,4)}, {R(A2+4*cb,4)}, {R(buf+8,4)}, 0")
        sc.add(k - 0.1, f"v_smfmac_f32_16x16x64_bf16 {R(acc,4)}, {R(A1+4*cb,4)}, {R(buf,8)}, v{vIDX}")
        for i in range(4):
            tt = k + 1.5 + 0.01*i
            if k == 0 and i == 0:
                sc.add(tt, f"v_mov_b32 v{S1}, v{acc}"); sc.add(tt, f"v_mul_f32 v{S2}, v{acc}, v{acc}")
            else:
                sc.add(tt, f"v_add_f32 v{S1}, v{acc+i}, v{S1}"); sc.add(tt, f"v_fmac_f32 v{S2}, v{acc+i}, v{acc+i}")
    m = e.merge; e.merge = 0
    sc.emit(e); e.merge = m

def layernorm(e, LN):
    e(f"v_permlane32_swap_b32 v{S1}, v{S2}\nv_add_f32 v{S1}, v{S1}, v{S2}\nv_mov_b32 v{S2}, v{S1}\nv_permlane32_swap_b32 v{S1}, v{S2}")
    e(f"v_mul_f32 v{S1}, {0x3c2aaaab:#x}, v{S1}\nv_mul_f32 v{S2}, {0x3c2aaaab:#x}, v{S2}\nv_fma_f32 v{S2}, -v{S1}, v{S1}, v{S2}\nv_max_f32 v{S2}, 0, v{S2}")
    e(f"v_add_f32 v{S2}, {0x3727c5ac:#x}, v{S2}\nv_rsq_f32 v{S2}, v{S2}\nv_mul_f32 v{S2}, {K_NEGK:#x}, v{S2}\nv_mul_f32 v{S1}, v{S1}, v{S2}")
    for r in range(48): e(f"v_fma_f32 v{ACC1+r}, v{ACC1+r}, v{S2}, -v{S1}")
    for t3 in range(3):
        for a in range(2):
            for z in range(2):
                cb = 4*t3 + 2*a + z
                for i in range(2): e(f"v_cvt_pk_bf16_f32 v{LN+12*z+4*t3+2*a+i}, v{ACC1+4*cb+2*i}, v{ACC1+4*cb+2*i+1}")
    for k in range(12): e(f"v_permlane16_swap_b32 v{LN+k}, v{LN+12+k}")

def wread(sl, F):
    a = fragA(F); return f"ds_read_b128 {R(sl,4)}, v{vB0 if a < 65536 else vB1} offset:{a & 65535}"

vMX = (14, 15)
def wread2(sl, blk, t):
    a, b = blk
    if a == b: return wread(sl, 3*a + t)
    return f"ds_read_b128 {R(sl,4)}, v{vMX[0] if b > a else vMX[1]} offset:{fragA(3*min(a,b) + t)}"

def gemm1(e, c, LN, extra):
    sc = Sched(); nw = 3; lead = 2; f = 0; nT = 0
    order = order1(c)
    for bi, B in enumerate(order):
        d = POOL + 8*(bi % 8); acc = SUM + B; sl = []
        for t in range(3):
            s_ = W + 4*(f % nw); f += 1; sl.append(s_)
            sc.add(bi + 2*(t - lead)/6 + 0.003, wread(s_, 3*B + t))
            for z in range(2):
                sc.add(bi + (2*t + z)/6, f"v_mfma_f32_16x16x32_bf16 {R(d+4*z,4)}, {R(LN+12*z+4*t,4)}, {R(s_,4)}, {'0' if t == 0 else R(d+4*z,4)}")
        if c.cls[B] == 'L':
            ng = [1,1,2,1,1,2]; r = d
            for k in range(6):
                ts = bi + 1 + (k+1)/6
                for _ in range(ng[k]):
                    sc.add(ts - 0.002, f"v_lshlrev_b32_sdwa v{r}, v{vONE}, v{r} {SDWA1}")
                    sc.add(ts + 0.002, f"ds_read_u16_d16_hi v{r}, v{r}")
                    sc.add(ts + 1.35, f"v_add_f32 v{acc}, v{r}, v{acc}")
                    r += 1
        else:
            n = 1
            while bi + n < 24 and c.cls[order[bi + n]] != 'V': n += 1
            span = min(n, 3) if bi + n >= 24 else n
            tt = T1 + 8*(nT % 2); nT += 1
            stages = [lambda r, t: f"v_fmaak_f32 v{t}, v{r}, v{r}, {K_A:#x}", lambda r, t: f"v_mul_f32 v{t}, v{r}, v{t}", lambda r, t: f"v_exp_f32 v{t}, v{t}",
                      lambda r, t: f"v_add_f32 v{t}, 1.0, v{t}", lambda r, t: f"v_rcp_f32 v{t}, v{t}", lambda r, t: f"v_mul_f32 v{t}, v{r}, v{t}", lambda r, t: f"v_fmac_f32 v{acc}, v{t}, v{t}"]
            wt = [1,1,2,1,2,1,1]; cum = 0
            for hh in range(2):
                for si, fn in enumerate(stages):
                    for k in range(4): sc.add(bi + 1.2 + span*(cum + wt[si]*k/4)/18, fn(d + 4*hh + k, tt + 4*hh + k))
                    cum += wt[si]
    for k, (t, g) in enumerate(extra):
        for i, l in enumerate(g): sc.add(t + 0.004 + 1e-5*i, l)
    emit_prio(sc, e, c.prio1)

def ln_mem(op, tile, base, mod=''):
    o = []
    for k in range(6):
        o.append([f"s_add_u32 s{sT0+2}, s{sLNO}, {tile*8*6144 + 1024*k}", f"buffer_{op}_dwordx4 {R(base+4*k,4)}, v{vB0}, s[{sWS}:{sWS+3}], s{sT0+2} offen{mod}"])
    return o

WR2 = 40; GBR = 88
def mixed_waves(c):
    m = [w for w in range(8) if c.mix and c.cls[3*w+1] == 'V']
    assert m == list(range(len(m))) and all(c.cls[B] == 'L' or B % 3 == 1 for B in range(24)) or not c.mix
    return len(m)
sHB = 66
def w2_loads(c):
    nm = mixed_waves(c)
    o = [[f"v_lshrrev_b32 v102, 4, v{vLANE}", f"v_mul_u32_u24 v100, 48, v102", f"v_mul_u32_u24 v102, {24*192}, v102", f"v_and_b32 v101, 15, v{vLANE}", f"v_mul_u32_u24 v101, 12, v101", f"v_add_u32 v101, v101, v102",
          f"s_mul_i32 s{sT0+5}, s{sWAVE}, 3", f"s_lshr_b32 s{sT0+4}, s{sWAVE}, 1", f"s_mul_i32 s{sT0+4}, s{sT0+4}, 90", f"s_add_u32 s{sT0+5}, s{sT0+5}, s{sT0+4}",
          f"s_cmp_lt_u32 s{sWAVE}, {nm}", f"s_cselect_b32 s{sMIX}, 1, 0"]]
    for i in range(3):
        for jj in range(4):
            pre = []
            if jj % 2 == 0:
                if i < 2 and jj == 2: pre = [f"s_xor_b32 s{sT0+3}, s{sMIX}, {i}", f"s_add_u32 s{sT0+3}, s{sT0+3}, s{sT0+5}"]
                else: pre = [f"s_add_u32 s{sT0+3}, s{sT0+5}, {i}"]
                pre += [f"s_mul_i32 s{sT0+4}, s{sT0+3}, 192", f"s_lshl_b32 s{sT0+3}, s{sT0+3}, 1"]
            o.append(pre + [f"buffer_load_dwordx3 {R(WR2+16*i+4*jj,3)}, v101, s[{sW2}:{sW2+3}], s{sT0+4} offen offset:{6*192*jj}",
                     f"buffer_load_ushort v{GBR+4*i+jj}, v100, s[{sGB}:{sGB+3}], s{sT0+3} offen offset:{12*jj}"])
    o.append([f"s_lshl_b32 s{sT0+3}, s{sREP}, 2", f"v_mov_b32 v103, 0", f"buffer_load_dword v102, v103, s[{sDBG}:{sDBG+3}], s{sT0+3} offen offset:64 sc0 sc1"])
    return o

def order1(c):
    V = [B for B in range(24) if c.cls[B] == 'V']; L = [B for B in range(24) if c.cls[B] == 'L']
    o = []; acc = c.vphase
    for k in range(24):
        acc += len(V0 := [B for B in range(24) if c.cls[B] == 'V'])
        if acc >= 24 and V: acc -= 24; o.append(V.pop(0))
        else: o.append(L.pop(0) if L else V.pop(0))
    return o

def units(c):
    if not c.mix:
        V = [B for B in range(24) if c.cls[B] == 'V']; L = [B for B in range(24) if c.cls[B] == 'L']
        M = [(B, B) for B in V]; P = [(B, B) for B in L]; big = M
    else:
        V = [B for B in range(24) if c.cls[B] == 'V']
        assert all(c.cls[B-1] == 'L' and B <= 17 for B in V)
        M = sum(([(B, B-1), (B-1, B)] for B in V), [])
        P = [(B, B) for B in range(24) if c.cls[B] == 'L' and B+1 not in V]
    U = []
    if c.mix:
        nMM = len(M) - 12 if len(M) > 12 else 0; nPP = 12 - len(M) if len(M) < 12 else 0
        acc = 6
        for u in range(12):
            acc += nMM + nPP
            if acc >= 12:
                acc -= 12; U.append((M.pop(0), M.pop(0)) if nMM else (P.pop(0), P.pop(0)))
            else: U.append((M.pop(0), P.pop(0)))
    else:
        nLL = 12 - len(M); acc = 0
        for u in range(12):
            acc += nLL
            if acc >= 12 or not M: acc -= 12; U.append((P.pop(0), P.pop(0)))
            else: U.append((M.pop(0), P.pop(0)))
    assert not M and not P
    return U

def UNP(L, o): return 16 + 6*L + o
def sync1(e, c, st):
    for k in range(0, 24, 2): e(f"v_permlane16_swap_b32 v{SUM+k}, v{SUM+k+1}")
    for k in range(0, 24, 2): e(f"v_add_f32 v{SUM+k}, v{SUM+k}, v{SUM+k+1}")
    for k in range(0, 24, 4): e(f"v_permlane32_swap_b32 v{SUM+k}, v{SUM+k+2}")
    for k in range(0, 24, 4): e(f"v_add_f32 v{SUM+k}, v{SUM+k}, v{SUM+k+2}")
    e(f"s_mul_i32 s{sT0}, s{sWAVE}, 1536\ns_add_u32 s{sT0}, s{sT0}, {RED}\nv_lshlrev_b32 v160, 2, v{vLANE}\nv_add_u32 v160, s{sT0}, v160")
    for k in range(6): e(f"ds_write_b32 v160, v{SUM+4*k} offset:{256*k}")
    e(f"s_lshl_b32 s{sT0}, s{sREP}, 2\nv_mov_b32 v161, 0\ns_mov_b32 s{sT0+1}, 0x100000")
    e(f"v_readfirstlane_b32 s{sT0+2}, v102\ns_nop 3\ns_cmp_lg_u32 s{sT0+2}, 0")
    e.raw("s_cbranch_scc1 L_flagged")
    e.label("L_flag")
    e(f"buffer_load_dword v162, v161, s[{sDBG}:{sDBG+3}], s{sT0} offen offset:64 sc0 sc1")
    e(f"v_readfirstlane_b32 s{sT0+2}, v162\ns_sub_u32 s{sT0+1}, s{sT0+1}, 1\ns_cmp_eq_u32 s{sT0+1}, 0")
    e.raw("s_cbranch_scc1 L_flagged")
    e(f"s_cmp_eq_u32 s{sT0+2}, 0")
    e.raw("s_cbranch_scc1 L_flag")
    e.label("L_flagged")
    e.wait(lgkm=0); e("s_barrier"); st(e, 'B1')
    e.raw(f"s_cmp_ge_u32 s{sWAVE}, 6\ns_cbranch_scc1 L_noat")
    e(f"v_lshlrev_b32 v160, 2, v0\nv_add_u32 v161, {RED}, v160")
    for w in range(8): e(f"ds_read_b32 v{164+w}, v161 offset:{1536*w}")
    for w in range(1, 8): e(f"v_add_f32 v164, v164, v{164+w}")
    e(f"s_mul_i32 s{sT0}, s{sREP}, 1536\ns_add_u32 s{sT0}, s{sT0}, {WS_SUM}")
    e.raw(f"buffer_atomic_add_f32 v164, v160, s[{sWS}:{sWS+3}], s{sT0} offen")
    e.label("L_noat")
    lut_build(e, False, 176); st(e, 'lut')
    for L in range(12): e(f"v_lshlrev_b32 v{GBR+L}, 16, v{GBR+L}")
    for L in range(12):
        for o in (0, 1, 2, 3, 5, 4):
            src = WR2 + 4*L + o//2
            e(f"v_and_b32 v{UNP(L,o)}, 0xffff0000, v{src}" if o % 2 else f"v_lshlrev_b32 v{UNP(L,o)}, 16, v{src}")
        for o in range(6):
            e(f"v_mul_f32 v{204+o}, v{UNP(L,o)}, v{GBR}" if L == 0 else f"v_fmac_f32 v{204+o}, v{UNP(L,o)}, v{GBR+L}")
    for k in range(0, 6, 2): e(f"v_permlane16_swap_b32 v{204+k}, v{205+k}")
    for k in range(0, 6, 2): e(f"v_add_f32 v{204+k}, v{204+k}, v{205+k}")
    e("v_mov_b32 v209, v208\nv_permlane32_swap_b32 v204, v206\nv_permlane32_swap_b32 v208, v209\nv_add_f32 v204, v204, v206\nv_add_f32 v208, v208, v209")
    e(f"v_and_b32 v200, 15, v{vLANE}\nv_mul_u32_u24 v200, 6, v200\nv_lshrrev_b32 v201, 4, v{vLANE}\nv_add_u32 v202, v200, v201\nv_and_b32 v201, 1, v201\nv_add3_u32 v203, v200, v201, 4")
    e(f"s_mul_i32 s{sT0}, s{sWAVE}, 384\ns_add_u32 s{sT0}, s{sT0}, {REDB}\nv_lshl_add_u32 v202, v202, 2, s{sT0}\nv_lshl_add_u32 v203, v203, 2, s{sT0}")
    e("ds_write_b32 v202, v204\nds_write_b32 v203, v208")
    e.wait(lgkm=0, vm=0); e("s_barrier"); st(e, 'B2')
    e.raw(f"s_cmp_lg_u32 s{sWAVE}, 0\ns_cbranch_scc1 L_nocnt")
    e(f"s_lshl_b32 s{sT0}, s{sREP}, 7\ns_add_u32 s{sT0}, s{sT0}, {WS_CNT}\nv_mov_b32 v200, 1\nv_mov_b32 v201, 0\ns_mov_b64 exec, 1")
    e.raw(f"buffer_atomic_add v200, v201, s[{sWS}:{sWS+3}], s{sT0} offen")
    e("s_mov_b64 exec, -1")
    e.label("L_nocnt")
    e.raw(f"s_cmp_lt_u32 s{sWAVE}, 6\ns_cbranch_scc1 L_nob2")
    e(f"v_subrev_u32 v200, 384, v0\nv_lshlrev_b32 v200, 2, v200\nv_add_u32 v201, {REDB}, v200")
    for w in range(8): e(f"ds_read_b32 v{204+w}, v201 offset:{384*w}")
    for w in range(1, 8): e(f"v_add_f32 v204, v204, v{204+w}")
    e(f"v_add_u32 v200, {B2F}, v200\nds_write_b32 v200, v204")
    e.label("L_nob2")
    e.wait(lgkm=0)
def setup2(c):
    class Rec:
        def __init__(self): self.l = []
        def __call__(self, t): self.l += [x for x in t.split("\n") if x]
    gs = []
    def grp(f): r = Rec(); f(r); gs.append(r.l)
    grp(lambda e: (srd(e, sOUT, sPOUT, XBYTES), srd(e, sG, sPG, 768)))
    grp(lambda e: e(f"v_add_u32 v{vB2}, 0x20000, v{vB0}\nv_lshrrev_b32 v104, 4, v{vLANE}\nv_mul_u32_u24 v104, 192, v104\nv_and_b32 v105, 15, v{vLANE}\nv_mul_u32_u24 v105, 12, v105\nv_add_u32 v{vOP}, v104, v105"))
    grp(lambda e: e(f"v_lshrrev_b32 v104, 4, v{vLANE}\ns_mul_i32 s{sT0}, s{sWAVE}, 3\ns_lshr_b32 s{sT0+1}, s{sWAVE}, 1\ns_mul_i32 s{sT0+1}, s{sT0+1}, 90\ns_add_u32 s{sT0}, s{sT0}, s{sT0+1}\nv_add_u32 v104, s{sT0}, v104\nv_and_b32 v105, 15, v{vLANE}\nv_mul_u32_u24 v105, 6, v105\nv_add_u32 v104, v104, v105\nv_lshlrev_b32 v104, 1, v104\nbuffer_load_ushort v111, v104, s[{sG}:{sG+3}], 0 offen"))
    grp(lambda e: e(f"v_bfe_u32 v104, v{vLANE}, 1, 1\nv_mul_u32_u24 v104, 3072, v104\nv_add_u32 v{vMX[0]}, v104, v{vB0}\nv_sub_u32 v104, 3072, v104\nv_add_u32 v{vMX[1]}, v104, v{vB0}"))
    grp(lambda e: e(f"v_lshlrev_b32 v7, 7, v{vLANE}\nv_lshrrev_b32 v104, 4, v{vLANE}\nv_min_u32 v104, 1, v104\nv_lshlrev_b32 v104, 31, v104\nv_or_b32 v7, v7, v104"))
    r = Rec(); image_addresses(r, c)
    n = len(r.l) // 3
    gs += [r.l[:n], r.l[n:2*n], r.l[2*n:]]
    return gs

def sum_loads(e, c):
    e(f"s_mul_i32 s{sT0}, s{sWAVE}, 192\ns_add_u32 s{sT0}, s{sT0}, {WS_SUM}\nv_lshlrev_b32 v110, 2, v{vLANE}")
    for r in range(NREP):
        e.raw(f"buffer_load_dword v{101+r}, v110, s[{sWS}:{sWS+3}], s{sT0} offen{c.sum_mod}\ns_add_u32 s{sT0}, s{sT0}, 1536")
OKW = MEANR + 64
def poll_ops():
    return [f"v_and_b32 v110, {NREP-1}, v{vLANE}", f"v_lshlrev_b32 v110, 7, v110", f"s_mov_b32 s{sT0+2}, {WS_CNT}", f"buffer_load_dword v109, v110, s[{sWS}:{sWS+3}], s{sT0+2} offen sc0 sc1"]
def early_poll(e):
    e.raw(f"s_cmp_lg_u32 s{sWAVE}, 1\ns_cbranch_scc1 L_nopoll")
    for l in poll_ops(): e.raw(l)
    e.label("L_nopoll")
def sync_early(e, c, st):
    st(e, 'pa')
    e(f"v_mov_b32 v110, {OKW}")
    e.raw(f"s_cmp_lg_u32 s{sWAVE}, 1\ns_cbranch_scc1 L_nook\ns_waitcnt vmcnt(0)")
    e(f"v_cmp_gt_u32 vcc, {256//NREP}, v109\ns_nop 4\ns_cmp_eq_u64 vcc, 0\ns_cselect_b32 s{sOK}, 1, 0\nv_mov_b32 v109, s{sOK}\nds_write_b32 v110, v109")
    e.label("L_nook")
    e.wait(lgkm=0); e("s_barrier"); st(e, 'pb')
    e(f"ds_read_b32 v109, v110")
def early_sums(c):
    o = [f"v_readfirstlane_b32 s{sOK}, v109", f"v_lshlrev_b32 v110, 2, v{vLANE}", f"s_mul_i32 s{sT0+3}, s{sWAVE}, 192", f"s_add_u32 s{sT0+3}, s{sT0+3}, {WS_SUM}", f"s_cmp_lg_u32 s{sOK}, 0", f"s_cselect_b32 s{sT0+3}, s{sT0+3}, {OOB:#x}"]
    return [o] + [[f"buffer_load_dword v{101+r}, v110, s[{sWS}:{sWS+3}], s{sT0+3} offen{c.sum_mod}", f"s_add_u32 s{sT0+3}, s{sT0+3}, 1536"] for r in range(NREP)]
def image_addresses(e, c):
    U = units(c); nm = mixed_waves(c)
    where = {blk: 2*u + H for u, p in enumerate(U) for H, blk in enumerate(p)}
    for i in range(3):
        pos = [where[(3*w+i, 3*w+(i^1 if i < 2 and w < nm else i))] for w in range(8)]
        lo = sum(pos[w] << (5*w) for w in range(4)); hi = sum(pos[w+4] << (5*w) for w in range(4))
        e(f"s_mov_b32 s{sT0+2}, {lo:#x}\ns_cmp_ge_u32 s{sWAVE}, 4\ns_cselect_b32 s{sT0+2}, {hi:#x}, s{sT0+2}\ns_and_b32 s{sT0}, s{sWAVE}, 3\ns_mul_i32 s{sT0}, s{sT0}, 5")
        e(f"s_lshr_b32 s{sT0+2}, s{sT0+2}, s{sT0}\ns_and_b32 s{sT0+1}, s{sT0+2}, 1\ns_lshl_b32 s{sT0+1}, s{sT0+1}, 3\ns_bfe_u32 s{sT0+2}, s{sT0+2}, 0x40001\ns_mul_i32 s{sT0+2}, s{sT0+2}, 6144\ns_add_u32 s{sT0+1}, s{sT0+1}, s{sT0+2}\ns_add_u32 s{(33,34,37)[i]}, s{sT0+1}, {W2L}")
def sync2(e, c, st):
    st(e, 'prew')
    e.raw(f"s_cmp_lg_u32 s{sOK}, 0\ns_cbranch_scc1 L_havesums")
    e.raw(f"s_cmp_lg_u32 s{sWAVE}, 1\ns_cbranch_scc1 L_arrived")
    e(f"s_mov_b32 s{sT0+1}, 0x100000")
    e.label("L_poll")
    for l in poll_ops(): e(l)
    e(f"v_cmp_gt_u32 vcc, {256//NREP}, v109\ns_sub_u32 s{sT0+1}, s{sT0+1}, 1\ns_cmp_eq_u32 s{sT0+1}, 0")
    e.raw("s_cbranch_scc1 L_arrived\ns_nop 4\ns_cbranch_vccnz L_poll")
    e.label("L_arrived")
    e("s_barrier")
    sum_loads(e, c)
    e.label("L_havesums")
    e.wait(vm=0); st(e, 'sld')
    for r in range(1, NREP): e(f"v_add_f32 v101, v101, v{101+r}")
    e(f"v_mov_b32 v103, {0x358637bd:#x}\nv_fmac_f32 v103, {K_INVK2:#x}, v101\nv_sqrt_f32 v103, v103")
    e(f"v_cmp_gt_u32 vcc, 48, v{vLANE}\ns_nop 1\nv_cndmask_b32 v104, 0, v103, vcc")
    wave_reduce_dpp(e, "v_add_f32", 104)
    e(f"s_lshl_b32 s{sT0+1}, s{sWAVE}, 2\ns_add_u32 s{sT0+1}, s{sT0+1}, {MEANR}\nv_mov_b32 v105, s{sT0+1}\ns_mov_b32 exec_lo, 0\ns_mov_b32 exec_hi, 0x80000000\nds_write_b32 v105, v104\ns_mov_b64 exec, -1")
    e(f"v_lshlrev_b32 v111, 16, v111\nv_mul_f32 v103, v103, v111\nv_lshrrev_b32 v104, 4, v{vLANE}\nv_lshlrev_b32 v104, 4, v104\ns_lshl_b32 s{sT0}, s{sMIX}, 6\nv_add_u32 v105, s{sT0}, v104\nv_subrev_u32 v106, s{sT0}, v104")
    for i in range(3):
        for jj in range(4):
            ad = 104 if (i == 2 or jj < 2) else (105 if i == 0 else 106)
            e(f"ds_bpermute_b32 v{GBR+4*i+jj}, v{ad}, v103 offset:{64*i+4*jj}")
    e.wait(lgkm=0); e("s_barrier"); st(e, 'B4')
    e(f"v_mov_b32 v105, {MEANR}\nds_read_b128 v[100:103], v105\nds_read_b128 v[104:107], v105 offset:16")
    e(f"v_and_b32 v110, 15, v{vLANE}\nv_mul_u32_u24 v110, 24, v110")
    for k in range(3): e(f"ds_read_b64 {R(BIAS+2*k,2)}, v110 offset:{B2F + 8*k}")
    for r in range(1, 8): e(f"v_add_f32 v100, v100, v{100+r}")
    e(f"v_mov_b32 v101, {0x358637bd:#x}\nv_fmac_f32 v101, {0x3b2aaaab:#x}, v100\nv_rcp_f32 v101, v101\nv_mov_b32 v102, {K_NINVK:#x}\nv_mul_f32 v101, v101, v102")
    for L in range(12): e(f"v_fma_f32 v{GBR+L}, v{GBR+L}, v101, v102")
    st(e, 'B5')
    for i in range(3):
        e(f"v_add_u32 v{100+i}, s{(33,34,37)[i]}, v{vB0}")
        for o in range(6):
            tp = 104 + 2*(o % 3)
            for jj in range(4): e(f"v_mul_f32 v{UNP(4*i+jj,o)}, v{UNP(4*i+jj,o)}, v{GBR+4*i+jj}")
            for a in range(2): e(f"v_cvt_pk_bf16_f32 v{tp+a}, v{UNP(4*i+2*a,o)}, v{UNP(4*i+2*a+1,o)}")
            e(f"ds_write_b64 v{100+i}, {R(tp,2)} offset:{1024*o}")
    e.wait(lgkm=0); e("s_barrier"); st(e, 'B6')

class Pass2:
    def __init__(self, c): self.c = c; self.U = units(c); self.f = 0; self.nT = 0; self.nw = 3; self.lead = 2
    NS = 48.0; NQ = 24.0
    def frag(self, sc, tm, text_fn, tmin):
        sl = W + 4*(self.f % self.nw); self.f += 1
        sc.add(max(tm - self.lead*4/self.NS + 0.0004, tmin), text_fn(sl)); return sl
    def G1(self, sc, t0, j, tmin=-99):
        for H in range(2):
            for t in range(3):
                tm = t0 + 4*(3*H + t)/self.NS; sl = self.frag(sc, tm, lambda s: wread2(s, self.U[j][H], t), tmin)
                for xz in range(4):
                    d = D + 32*(j % 2) + 8*xz + 4*H
                    sc.add(tm + xz/self.NS, f"v_mfma_f32_16x16x32_bf16 {R(d,4)}, {R(sl,4)}, {R(LN2+12*xz+4*t,4)}, {'0' if t == 0 else R(d,4)}")
    def G2(self, sc, t0, j, tmin=-99):
        for o in range(6):
            a = W2L + 6144*j + 1024*o
            tm = t0 + 4*o/self.NS; sl = self.frag(sc, tm, lambda s: f"ds_read_b128 {R(s,4)}, v{(vB0, vB1, vB2)[a >> 16]} offset:{a & 65535}", tmin)
            ct = D + 8*(o % 4) + 4
            if j == 0:
                for i in range(4): sc.add(max(tm - 3.5/self.NS, tmin), f"v_mov_b32 v{ct+i}, v{BIAS+o}")
            for xz in range(4):
                d = ACC + 24*xz + 4*o
                sc.add(tm + xz/self.NS, f"v_mfma_f32_16x16x32_bf16 {R(d,4)}, {R(D+32*(j%2)+8*xz,4)}, {R(sl,4)}, {R(ct,4) if j == 0 else R(d,4)}")
    def GELU(self, sc, t0, j):
        NQ, NS = self.NQ, self.NS
        for q in range(4):
            d = D + 32*(j % 2) + 8*q
            tq = t0 + (0.5 + (NQ - 8.0)*q/3)/NQ
            Lp = [p for p in range(4) if self.c.cls[self.U[j][p >> 1][p & 1]] == 'L']; Vp = [p for p in range(4) if p not in Lp]
            for k, p in enumerate(Lp):
                ts = round((tq + (k + 0.5)/NQ)*NS)/NS
                for z in range(2):
                    r = d + 2*p + z
                    sc.add(ts - 0.002, f"v_lshlrev_b32_sdwa v{r}, v{vONE}, v{r} {SDWA1}")
                    sc.add(ts + 0.002, f"ds_read_u16_d16{'_hi' if z else ''} v{r}, v{r}")
            els = [(d + 2*p + z) for p in Vp for z in range(2)]
            tr = []
            for r in els: tr.append(T2 + self.nT % 8); self.nT += 1
            stages = [lambda r, t: f"v_fmaak_f32 v{t}, v{r}, v{r}, {K_A:#x}", lambda r, t: f"v_mul_f32 v{t}, v{r}, v{t}", lambda r, t: f"v_exp_f32 v{t}, v{t}",
                      lambda r, t: f"v_add_f32 v{t}, 1.0, v{t}", lambda r, t: f"v_rcp_f32 v{t}, v{t}", lambda r, t: f"v_mul_f32 v{t}, v{r}, v{t}"]
            for si, f in enumerate(stages):
                for k, (r, t) in enumerate(zip(els, tr)): sc.add(tq + (0.1 + si + 0.6*k/max(len(els),1))/NQ, f(r, t))
            late = False
            for p in range(4):
                if p in Vp:
                    k = Vp.index(p); sc.add(tq + (7.2/NQ + 0.001*p if late else (6.3 + 0.1*k)/NQ), f"v_cvt_pk_bf16_f32 v{d+p}, v{tr[2*k]}, v{tr[2*k+1]}")
                else:
                    late = True; sc.add(tq + 7.2/NQ + 0.001*p, f"v_or_b32 v{d+p}, v{d+2*p}, v{d+2*p+1}")
    def rowbase(self, sc, t, tiles, xz, sreg):
        sc.add(t, f"s_add_u32 s{sreg}, s{sTILE+tiles[xz >> 1]}, {(xz & 1)*ROWB}")
    RW = [1,1,2,3,3,4,5,5,6,7,7,8,9,9,10,11]
    SL = (TMP, TMP+4, 252)
    def rtime(self, k): return self.RW[k] + (0.76 if k and self.RW[k-1] == self.RW[k] else 0.56)
    def resid_load(self, sc, tl, tiles, k):
        xz, r = k >> 2, k & 3; tmp = self.SL[k % 3]
        self.rowbase(sc, tl, tiles, xz, sT0)
        sc.add(tl, f"buffer_load_dwordx3 {R(tmp,3)}, v{vOP}, s[{sX}:{sX+3}], s{sT0} offen offset:{768*r}{self.c.x2_mod}")
    def resid(self, sc, b, tiles, k):
        xz, r = k >> 2, k & 3; tmp = self.SL[k % 3]; ta = b + self.rtime(k)
        for o in range(6):
            a = ACC + 24*xz + 4*o + r; tt = ta + 0.025*o
            sc.add(tt, f"v_and_b32 v{tmp+3}, 0xffff0000, v{tmp+o//2}" if o % 2 else f"v_lshlrev_b32 v{tmp+3}, 16, v{tmp+o//2}")
            sc.add(tt + 0.01, f"v_add_f32 v{a}, v{tmp+3}, v{a}")
        if k + 3 < 16: self.resid_load(sc, ta + 0.15, tiles, k + 3)
    def epilogue(self, sc, t0, tiles, span):
        for k in range(16):
            xz, r = k >> 2, k & 3; tmp = D + 32 + 8*(k % 4) + 4; tm = t0 + span*k/16
            for P in range(3): sc.add(tm, f"v_cvt_pk_bf16_f32 v{tmp+P}, v{ACC+24*xz+8*P+r}, v{ACC+24*xz+8*P+4+r}")
            self.rowbase(sc, tm, tiles, xz, sT0)
            sc.add(tm, f"buffer_store_dwordx3 {R(tmp,3)}, v{vOP}, s[{sOUT}:{sOUT+3}], s{sT0} offen offset:{768*r}{self.c.st_mod}")
    def pre(self, e, st):
        sc = Sched()
        for k in range(3): self.resid_load(sc, 0.1*k, (3, 2), k)
        self.G1(sc, -0.5, 0); self.G1(sc, 0.5, 1); self.GELU(sc, 0, 0)
        late = [o for o in sc.ops if o[0] >= self.c.tpoll]; full = list(sc.ops)
        sc.check(sorted(full, key=lambda o: (o[0], o[1]))); nm = 0
        if self.c.prio2: e("s_setprio 3")
        for o in sorted(full, key=lambda o: (o[0], o[1])):
            if late and o is min(late, key=lambda o: (o[0], o[1])): early_poll(e); late = None
            e(o[2])
            if o[2].startswith('v_mfma'):
                nm += 1
                if self.c.prio2 and nm % 12 == 0: e(f"s_setprio {3 - (nm // 12) % 4}")
        e("s_setprio 0")
        sc.ops = []
        sync_early(e, self.c, st)
        self.GELU(sc, 1, 1)
        for k, g in enumerate(early_sums(self.c)):
            for l in g: sc.add(1.08 + 0.05*k, l)
        emit_prio(sc, e, 0)
    def main(self, e, st):
        sc = Sched()
        for pair in range(2):
            b = 13*pair; tiles = (3, 2) if pair == 0 else (0, 1)
            if pair == 1:
                self.G1(sc, b - 0.5, 0)
                self.epilogue(sc, b - 0.45, (3, 2), self.c.espan)
                self.G1(sc, b + 0.5, 1)
                for k in range(3): self.resid_load(sc, b - 0.6 + 0.3*k, tiles, k)
            for j in range(12):
                st(e, f'p{pair}j{j}', sc, b + j)
                if j == 11: st(e, f'p{pair}j12', sc, b + 12); st(e, f'p{pair}j12h', sc, b + 12.5)
                if pair == 1 or j >= 2: self.GELU(sc, b + j, j)
                if pair == 0 and self.c.pf and self.c.pf <= j < self.c.pf + 6:
                    k = j - self.c.pf
                    sc.add(b + j + 0.93, f"s_add_u32 s{sT0+2}, s{sLNO}, {(k // 3)*8*6144 + 2048*(k % 3)}")
                    sc.add(b + j + 0.93, f"buffer_load_dword v0, v7, s[{sWS}:{sWS+3}], s{sT0+2} offen")
                if j == 10 and pair == 0:
                    for k, g in enumerate(ln_mem("load", 0, LN2) + ln_mem("load", 1, LN2+24)):
                        for l in g: sc.add(b + 11.003 + 0.04*k, l)
                self.G2(sc, b + j + 1, j, tmin=0.9)
                for k in range(16):
                    if self.RW[k] == j + 1: self.resid(sc, b, tiles, k)
                if j + 2 < 12: self.G1(sc, b + j + 1.5, j + 2)
        st(e, 'epi', sc, 25.5)
        self.epilogue(sc, 25.52, (0, 1), 0.3)
        emit_prio(sc, e, self.c.prio2)

def kernel(name, c):
    e = Emit(); e.merge = 0
    XMOD[0] = c.x_mod
    st = Stamps(c.stamp)
    st(e, 'rt0', real=True); st(e, 'entry')
    if c.diag_pad: e.raw("s_memrealtime s[68:69]")
    prologue(e, c, st)
    for s in range(4):
        if s: e.wait(lgkm=0, vm=0); e("s_barrier")
        st(e, f'go{s}')
        if s in (1, 2): ticket(e, s)
        conv(e, s)
        if s == 0: st(e, 'conv0'); w1_image(e, c, st); ticket(e, 0)
        else: e("s_barrier")
        LN = LNA if s < 3 else LN2
        layernorm(e, LN)
        extra = []
        if s < 3:
            g = sum((dma_ops(t) for t in range(4*s+5, 4*s+9)), [])
            extra += [(0.5 + c.dsp*k, x) for k, x in enumerate(g)]
        if s < 2 and not c.nospill: extra += [(c.sp0 + c.ssp*k, x) for k, x in enumerate(ln_mem("store", s, LN, c.sp_mod))]
        if s == 3:
            extra += [(1.0 + 1.5*k, x) for k, x in enumerate(w2_loads(c))]
            extra += [(1.7 + 1.5*k, x) for k, x in enumerate(setup2(c))]
        st(e, f'ln{s}')
        e.merge = c.merge
        gemm1(e, c, LN, extra)
        e.merge = 0
        st(e, f'gemm{s}')
    sync1(e, c, st)
    p = Pass2(c)
    e.merge = c.merge
    st(e, 'p0'); p.pre(e, st)
    e.merge = 0
    sync2(e, c, st)
    e.merge = c.merge
    p.main(e, st)
    if c.diag_pad:
        e.raw(f"s_waitcnt vmcnt(0) lgkmcnt(0)\nL_pad:\ns_memrealtime s[70:71]\ns_waitcnt lgkmcnt(0)\ns_sub_u32 s70, s70, s68\ns_cmp_lt_u32 s70, {c.diag_pad}\ns_cbranch_scc1 L_pad")
    st(e, 'end'); st(e, 'rt1', real=True)
    if c.dbg is not None: st.flush_dbg(e, sDBG, sWAVE, c.dbg)
    else: st.flush(e, sWS, sWAVE, 0)
    e.label("L_end")
    e.raw("s_endpgm")
    return khead(name) + e.text() + "\n" + kdesc(name), st.names

if __name__ == '__main__':
    import sys
    HEADER = open('standalone__modern_conv_block_slak__vision.s.ref').read().split('; Override launch')[0]
    out = sys.argv[1] if len(sys.argv) > 1 else 'standalone__modern_conv_block_slak__vision.s'
    c = Cfg()
    for k, v in eval('dict(' + (sys.argv[2] if len(sys.argv) > 2 else '') + ')').items(): setattr(c, k, v)
    body, names = kernel('standalone__modern_conv_block_slak__vision_kernel', c)
    s = HEADER + ("; @launch kernel=standalone__modern_conv_block_slak__vision_kernel grid=(256,1,1) block=(512,1,1) lds=163840\n" if c.aslist else "; @launch grid=(256,1,1) block=(512,1,1) lds=163840\n") + '.amdgcn_target "amdgcn-amd-amdhsa--gfx950"\n.text\n' + body
    if c.stamp: s += f'; STAMPS {names!r}\n'
    open(out, 'w').write(s)
```

```python
import re
RE_V = re.compile(r'(?<![a-z_0-9])([va])(?:\[(\d+):(\d+)\]|(\d+)(?![\w]))')
TRANS = ('v_exp_f32','v_rcp_f32','v_rsq_f32','v_sqrt_f32','v_log_f32','v_sin_f32','v_cos_f32','v_rcp_iflag_f32')
def regs_of(tok):
    out = []
    for m in RE_V.finditer(tok):
        base = 0 if m.group(1) == 'v' else 1000
        if m.group(2) is not None: out += [base + r for r in range(int(m.group(2)), int(m.group(3)) + 1)]
        else: out.append(base + int(m.group(4)))
    return out
def split_ops(s):
    ops = []; depth = 0; cur = ''
    for ch in s:
        if ch == '[': depth += 1
        if ch == ']': depth -= 1
        if ch == ',' and depth == 0: ops.append(cur.strip()); cur = ''
        else: cur += ch
    if cur.strip(): ops.append(cur.strip())
    return ops
class Ins:
    __slots__ = ('text','op','kind','defs','uses','passes','srcc','sdefs','suses')
def classify(text):
    I = Ins(); I.text = text
    parts = text.split(None, 1); op = parts[0]; I.op = op
    ops = split_ops(parts[1]) if len(parts) > 1 else []
    I.defs = []; I.uses = []; I.passes = 0; I.srcc = []
    if op.startswith('v_mfma') or op.startswith('v_smfmac'):
        I.kind = 'mfma'; I.defs = regs_of(ops[0])
        I.passes = 8 if '32x32' in op else 4
        if op.startswith('v_mfma'):
            I.uses = regs_of(ops[1]) + regs_of(ops[2]); I.srcc = regs_of(ops[3].split()[0])
        else:
            I.uses = regs_of(ops[1]) + regs_of(ops[2]) + regs_of(ops[3].split()[0]); I.srcc = list(I.defs)
    elif op.startswith('ds_'):
        if op.startswith('ds_read') or op.startswith('ds_bpermute') or op.startswith('ds_swizzle') or '_rtn' in op:
            I.kind = 'ds_r'; I.defs = regs_of(ops[0]); I.uses = sum((regs_of(o.split()[0]) for o in ops[1:]), [])
        else:
            I.kind = 'ds_w'; I.uses = sum((regs_of(o.split()[0]) for o in ops), [])
    elif op.startswith('buffer_') or op.startswith('global_'):
        if op in ('buffer_wbl2', 'buffer_inv'):
            I.kind = 'vm_w'
        elif '_load' in op:
            if text.rstrip().endswith(' lds') or ' lds ' in text:
                I.kind = 'vm_w'; I.uses = regs_of(ops[0])
            else:
                I.kind = 'vm_r'; I.defs = regs_of(ops[0]); I.uses = sum((regs_of(o.split()[0]) for o in ops[1:]), [])
        elif 'atomic' in op and ' sc0' in text:
            I.kind = 'vm_r'; I.defs = regs_of(ops[0]); I.uses = sum((regs_of(o.split()[0]) for o in ops), [])
        else:
            I.kind = 'vm_w'; I.uses = sum((regs_of(o.split()[0]) for o in ops), [])
    elif op.startswith('v_'):
        I.kind = 'trans' if op.replace('_e32','').replace('_e64','') in TRANS else 'valu'
        if op.startswith('v_cmp'):
            I.uses = sum((regs_of(o) for o in ops[1:]), [])
        elif op.startswith('v_readfirstlane') or op.startswith('v_readlane'):
            I.uses = regs_of(ops[1])
        elif op.startswith('v_permlane') and 'swap' in op:
            I.defs = regs_of(ops[0]) + regs_of(ops[1]); I.uses = list(I.defs)
        else:
            I.defs = regs_of(ops[0])
            I.uses = sum((regs_of(o.split()[0] if ' ' in o and not o.startswith('-') else o) for o in ops[1:]), [])
            if op.startswith('v_fmac') or op.startswith('v_dot2c') or 'UNUSED_PRESERVE' in text or '_dpp' in op or op.startswith('v_writelane'):
                I.uses += I.defs
    else:
        I.kind = 'salu'
    return I
class Emit:
    def __init__(self):
        self.lines = []
        self.hist = []
        self.lgkm = []
        self.vm = []
        self.nnop = 0; self.nwait = 0; self.count = 0
        self.lage = []
        self.merge = 0
    def raw(self, text):
        self.lines.append(text)
    def label(self, name):
        self.lines.append(name + ':')
    def _states(self, n):
        while n > 0:
            k = min(n, 16); self.lines.append(f's_nop {k-1}'); self.hist += [None] * k; n -= k; self.nnop += 1
    def wait(self, lgkm=None, vm=None):
        t = []
        if vm is not None:
            vm = min(vm, 63); t.append(f'vmcnt({vm})'); self.vm = self.vm[len(self.vm) - vm:] if vm < len(self.vm) else self.vm
            if vm == 0: self.vm = []
        if lgkm is not None:
            lgkm = min(lgkm, 15); t.append(f'lgkmcnt({lgkm})')
            if lgkm < len(self.lgkm):
                self.lage = self.lage[len(self.lgkm) - lgkm:]; self.lgkm = self.lgkm[len(self.lgkm) - lgkm:]
            if lgkm == 0: self.lgkm = []; self.lage = []
        self.lines.append('s_waitcnt ' + ' '.join(t)); self.hist.append(None); self.nwait += 1
    def __call__(self, text):
        for t in text.split('\n'):
            t = t.strip()
            if t: self.one(t)
    def one(self, text):
        if text.startswith('@wait'):
            return self.wait(**eval('dict(' + text[5:] + ')'))
        if text.startswith('@merge'):
            self.merge = int(text[6:]); return
        I = classify(text)
        touched = set(I.uses) | set(I.defs) | set(I.srcc)
        need_l = None; need_v = None
        for idx, d in enumerate(self.lgkm):
            if d & touched: need_l = len(self.lgkm) - 1 - idx
        for idx, d in enumerate(self.vm):
            if d & touched: need_v = len(self.vm) - 1 - idx
        if I.kind == 'ds_r' and need_l is not None and not (set(I.uses) & set().union(*self.lgkm)):
            need_l = None
        if need_l is not None and self.merge:
            young = sum(1 for a in self.lage if self.count - a < self.merge)
            need_l = min(need_l, young)
        if need_l is not None or need_v is not None: self.wait(need_l, need_v)
        need = 0
        H = self.hist
        for dist in range(1, min(len(H), 20) + 1):
            P = H[-dist]
            if P is None: continue
            gap = dist - 1
            req = 0
            pd = set(P.defs)
            if P.kind == 'mfma':
                big = P.passes == 8
                if I.kind == 'mfma':
                    if pd & set(I.uses): req = 12 if big else 8
                    elif pd & set(I.srcc):
                        if not (P.passes == I.passes and P.defs == I.srcc): req = 10 if big else 6
                    elif pd & set(I.defs): req = 10 if big else 6
                elif I.kind != 'salu':
                    if pd & touched: req = 12 if big else 8
                    if I.kind in ('valu','trans') and set(P.srcc) & set(I.defs): req = max(req, 7 if big else 3)
            elif P.kind in ('valu', 'trans'):
                if I.kind == 'mfma' and pd & (set(I.uses) | set(I.srcc)): req = 2
                if P.kind == 'trans' and I.kind in ('valu',) and pd & set(I.uses): req = max(req, 1)
                if (I.op.startswith('v_permlane') or '_dpp' in I.op) and pd & set(I.uses): req = max(req, 2)
                if (I.op.startswith('v_readlane') or I.op.startswith('v_readfirstlane')) and pd & set(I.uses): req = max(req, 1)
                if 'dst_sel:WORD' in P.text and I.kind in ('valu','trans') and pd & touched: req = max(req, 1)
            elif P.kind == 'vm_w' and ('x4' in P.op or 'x3' in P.op) and 'store' in P.op:
                if I.kind in ('valu','trans','mfma') and set(P.uses) & set(I.defs): req = 2
            if req - gap > need: need = req - gap
        if need > 0: self._states(need)
        self.lines.append(text); self.hist.append(I); self.count += 1
        if len(self.hist) > 64: self.hist = self.hist[-32:]
        if I.kind == 'ds_r': self.lgkm.append(set(I.defs)); self.lage.append(self.count)
        elif I.kind == 'ds_w': self.lgkm.append(set()); self.lage.append(self.count)
        elif I.kind == 'vm_r': self.vm.append(set(I.defs))
        elif I.kind == 'vm_w': self.vm.append(set())
    def text(self):
        return '\n'.join(self.lines)

class Sched:
    def __init__(self):
        self.ops = []
    def add(self, t, text):
        self.ops.append((t, len(self.ops), text))
    def check(self, order):
        pos = {idx: p for p, (_, idx, _) in enumerate(order)}
        lastw = {}; readers = {}
        bad = 0
        for (t, idx, text) in self.ops:
            I = classify(text)
            uses = set(I.uses) | set(I.srcc); defs = set(I.defs)
            for r in uses:
                if r in lastw and pos[lastw[r]] > pos[idx]:
                    bad += 1; print(f"RAW violated r{r}: '{self.ops[lastw[r]][2]}' t={self.ops[lastw[r]][0]:.3f} must precede '{text}' t={t:.3f}")
            for r in defs:
                if r in lastw and pos[lastw[r]] > pos[idx]:
                    bad += 1; print(f"WAW violated r{r}: '{self.ops[lastw[r]][2]}' t={self.ops[lastw[r]][0]:.3f} must precede '{text}' t={t:.3f}")
                for q in readers.get(r, ()):
                    if q != idx and pos[q] > pos[idx]:
                        bad += 1; print(f"WAR violated r{r}: '{self.ops[q][2]}' t={self.ops[q][0]:.3f} must precede '{text}' t={t:.3f}")
            for r in uses: readers.setdefault(r, []).append(idx)
            for r in defs: lastw[r] = idx; readers[r] = []
            if bad > 10: break
        assert bad == 0, "schedule violates dependencies"
    def emit(self, e):
        order = sorted(self.ops, key=lambda o: (o[0], o[1]))
        self.check(order)
        for (_, _, text) in order: e(text)
        self.ops = []
```

```python
XBYTES = 50331648
ROWB = 98304
WSBYTES = 268435456
WS_LN = 0
WS_W1B = 50331648
WS_W2R = WS_W1B + 73728
WS_LUT = WS_W2R + 73728
WS_B2 = WS_LUT + 16384
WS_SUM = WS_B2 + 512
import os
NREP = int(os.environ.get("NREP", "8"))
K_A = 0x409d30fc
K_NEGK = 0xbeeff558
K_NINVK = 0xc0088e99
K_INVK2 = 0x4091afa4
OOB = 0x80000000
SDWA1 = "dst_sel:DWORD dst_unused:UNUSED_PAD src0_sel:DWORD src1_sel:WORD_1"
def srd(e, s, ptr, size):
    e(f"s_mov_b32 s{s}, s{ptr}\ns_and_b32 s{s+1}, s{ptr+1}, 0xffff\ns_mov_b32 s{s+2}, {size}\ns_mov_b32 s{s+3}, 0x20000")
def R(a, n): return f"v[{a}:{a+n-1}]"
def kdesc(name, nv=256, ns=102):
    return f""".section .rodata,"a"
.p2align 6
.amdhsa_kernel {name}
  .amdhsa_next_free_vgpr {nv}
  .amdhsa_next_free_sgpr {ns}
  .amdhsa_accum_offset {nv}
  .amdhsa_group_segment_fixed_size 0
  .amdhsa_kernarg_size 72
  .amdhsa_user_sgpr_count 2
  .amdhsa_user_sgpr_kernarg_segment_ptr 1
  .amdhsa_system_sgpr_workgroup_id_x 1
  .amdhsa_float_denorm_mode_32 3
.end_amdhsa_kernel
.text
"""
def khead(name):
    return f""".globl {name}
.p2align 8
.type {name},@function
{name}:
"""
def gelu_y(e, y, x, t):
    e(f"v_fmaak_f32 v{t}, v{x}, v{x}, {K_A:#x}\nv_mul_f32 v{t}, v{x}, v{t}\nv_exp_f32 v{t}, v{t}\nv_add_f32 v{t}, 1.0, v{t}\nv_rcp_f32 v{t}, v{t}\nv_mul_f32 v{y}, v{x}, v{t}")
def wave_reduce_dpp(e, op, v, ident_ok=True):
    for c in ("row_shr:1", "row_shr:2", "row_shr:4", "row_shr:8"):
        e(f"{op}_dpp v{v}, v{v}, v{v} {c} row_mask:0xf bank_mask:0xf")
    e(f"{op}_dpp v{v}, v{v}, v{v} row_bcast:15 row_mask:0xa bank_mask:0xf")
    e(f"{op}_dpp v{v}, v{v}, v{v} row_bcast:31 row_mask:0xc bank_mask:0xf")

WS_STAMP = 64 << 20
class Stamps:
    def __init__(self, on): self.on = on; self.names = []; self.only = None if on is True else on
    phase = None
    def __call__(self, e, name, sc=None, t=None, real=False):
        if self.phase and name in self.phase:
            k = self.phase.index(name); txt = f"s_memrealtime s[{72+2*k}:{73+2*k}]"
            if sc is not None: sc.add(t, txt)
            else: e.raw(txt)
        if not self.on: return
        if self.only and name not in self.only.split() + ['rt0', 'rt1', 'entry', 'end']: return
        k = len(self.names); self.names.append(name); assert k < 17, name
        txt = f"s_{'memrealtime' if real else 'memtime'} s[{68+2*k}:{69+2*k}]"
        if sc is not None: sc.add(t, txt)
        else: e.raw(txt)
    def flush_dbg(self, e, sdbg, swave, wg):
        e.raw(f"s_waitcnt lgkmcnt(0)\ns_cmp_lg_u32 s2, {wg}\ns_cbranch_scc1 L_end\ns_cmp_lg_u32 s{swave}, 0\ns_cbranch_scc1 L_end")
        n = len(self.names)
        for k in range(2, n):
            e.raw(f"s_sub_u32 s{68+2*k}, s{68+2*k}, s{68 if k == n-1 else 70}\nv_writelane_b32 v255, s{68+2*k}, {k-2}")
        e.raw(f"v_lshlrev_b32 v254, 2, v1\ns_mov_b64 exec, 0xff\nbuffer_store_dword v255, v254, s[{sdbg}:{sdbg+3}], 0 offen offset:32\ns_mov_b64 exec, -1")
    def flush(self, e, sws, swave, which):
        if not self.on: return
        e.raw("s_waitcnt lgkmcnt(0)")
        e.raw(f"s_lshl_b32 s66, s2, 3\ns_add_u32 s66, s66, s{swave}\ns_lshl_b32 s66, s66, 7\ns_add_u32 s66, s66, {WS_STAMP + which*(1<<20)}")
        for k in range(len(self.names)): e.raw(f"v_writelane_b32 v255, s{68+2*k}, {k}")
        e.raw(f"v_lshlrev_b32 v254, 2, v1\ns_mov_b64 exec, 0xffffffff\nbuffer_store_dword v255, v254, s[{sws}:{sws+3}], s66 offen\ns_mov_b64 exec, -1")
```

```python
from asm import *
from common import *
RING = 90112; PAIRB = 13312; ROWL = 6656
SCR = RING + 5 * PAIRB
SCR_DW = SCR; SCR_MAX = SCR + 2048; SCR_DUMMY = SCR + 3072
W2L = RING
RED = RING; REDB = RING + 12288; B2F = 8192 - 512; MEANR = 65536 + 8192 - 512
WS_SUM = 0x3000000; WS_CNT = WS_SUM + NREP * 1536
S0 = 104
def fragA(F): return 8192 + 1024 * F if F < 56 else 73728 + 1024 * (F - 56)
vLANE = 1; vB0 = 2; vB1 = 3; vOFA = 4; vOFB = 5; vONE = 6; vIDX = 7; vCB = 8; vAD = 11; vHALF = 14; vT = 15
SUM = 16; A1 = 40; A2 = 88; LNA = 136
ACC1 = 160; CBUF = 208; S1, S2 = 252, 253
def cacc(cb): return ACC1 + 4*(3*(cb % 4) + cb // 4)
POOL = 160; T1 = 224; W = 240
vB2 = 4; vOP = 5; BIAS = 8
ACC = 16; LN2 = 112; D = 160; T2 = 224; TMP = 232; CT = (252, 232)
sX = 4; sWS = 8; sW1 = 12; sDW = 16; sW2 = 20; sGB = 24; sDBG = 28; sOUT = 12; sG = 16
sWAVE = 32; sX0 = 33; sY0 = 34; sS = 35; sNS = 36; sDMA = 37; sLNO = 38; sMB = 39; sMA = 40; sREP = 41; sTK = 42; sFLAG = 43; sMIX = 39; sOK = 40; sWA = 33; sT0 = 44
sPG = 56; sPOUT = 60
sTILE = 52

def emit_prio(sc, e, n):
    if not n: return sc.emit(e)
    order = sorted(sc.ops, key=lambda o: (o[0], o[1])); sc.check(order)
    m = 0; k = 0
    e("s_setprio 3")
    for (_, _, text) in order:
        e(text)
        if text.startswith('v_mfma') or text.startswith('v_smfmac'):
            m += 1
            if m % n == 0: k += 1; e(f"s_setprio {3 - k % 4}")
    e("s_setprio 0"); sc.ops = []

class Cfg:
    prio1 = 12; prio2 = 12
    cls = "LVLLVL" * 3 + "LLLLLL"
    merge = 12
    prio = 0
    stamp = False
    st_mod = ""
    remap = False
    dbg = None
    st_mod1 = ''
    pre_n = 34
    x0 = 2
    xsp = 30
    xbar = False
    diag_phase = None
    aslist = False
    diag_pad = 0
    tpoll = 0.55
    sum_mod = ' sc0 sc1'
    mix = True
    vphase = 18
    gap = 4.0
    cdt = 0.27
    gl1 = 1.35
    vend = 24.0
    d0 = 1.0
    nospill = False
    sp0 = 19.5
    ssp = 0.7
    sp_mod = ''
    x_mod = ''
    dsp = 2.2
    pf = 4
    x2_mod = ''
    espan = 1.18

XMOD = ['']
def dma_ops(t, first=False, offA=vOFA, offB=vOFB):
    slot = (t % 5) * PAIRB + RING
    so = "0" if first else f"s{sT0}"
    pre = [] if first else [f"s_add_u32 s{sT0}, s{sDMA}, {2*t*ROWB}"]
    ga = pre + [f"s_add_u32 m0, s{sMA}, {slot}", "s_nop 0", f"buffer_load_dwordx4 v{offA}, s[{sX}:{sX+3}], {so} offen{XMOD[0]} lds"]
    gb = pre + [f"s_add_u32 s{sT0+1}, s{sMB}, {slot}", f"s_cmp_lt_u32 s{sWAVE}, 5", f"s_cselect_b32 m0, s{sT0+1}, {SCR_DUMMY}", "s_nop 0",
                f"buffer_load_dwordx4 v{offB}, s[{sX}:{sX+3}], {so} offen{XMOD[0]} lds"]
    return [ga, gb]

def lut_build(e, square, base):
    b = base
    e(f"v_lshlrev_b32 v{b+1}, 19, v0\nv_or_b32 v{b+1}, 0x8000, v{b+1}\nv_lshlrev_b32 v{b}, 4, v0\nv_add_u32 v{b+2}, 0x10000, v{b}")
    X = b + 4; Y = b + 8; O = b + 12
    for q in range(0, 8, 4):
        for z in range(4): e(f"v_add_u32 v{X+z}, {(q+z)<<16:#x}, v{b+1}")
        for z in range(4): e(f"v_ldexp_f32 v{X+z}, v{X+z}, s{sS}")
        for z in range(4): e(f"v_fmaak_f32 v{Y+z}, v{X+z}, v{X+z}, {K_A:#x}")
        for z in range(4): e(f"v_mul_f32 v{Y+z}, v{X+z}, v{Y+z}")
        for z in range(4): e(f"v_exp_f32 v{Y+z}, v{Y+z}")
        for z in range(4): e(f"v_add_f32 v{Y+z}, 1.0, v{Y+z}")
        for z in range(4): e(f"v_rcp_f32 v{Y+z}, v{Y+z}")
        for z in range(4): e(f"v_mul_f32 v{Y+z}, v{X+z}, v{Y+z}")
        for z in range(4): e(f"v_sub_f32 v{X+z}, v{Y+z}, v{X+z}")
        if square:
            for z in range(8): e(f"v_mul_f32 v{X+z}, v{X+z}, v{X+z}")
        e(f"v_cvt_pk_bf16_f32 v{O+q//2}, v{Y}, v{Y+1}\nv_cvt_pk_bf16_f32 v{O+1+q//2}, v{Y+2}, v{Y+3}")
        e(f"v_cvt_pk_bf16_f32 v{O+4+q//2}, v{X}, v{X+1}\nv_cvt_pk_bf16_f32 v{O+5+q//2}, v{X+2}, v{X+3}")
    e(f"ds_write_b128 v{b}, {R(O,4)}\nds_write_b128 v{b+2}, {R(O+4,4)}")

def WR(i, jj):
    L = 4*i + jj
    return SUM + 4*L if L < 6 else LNA + 4*(L - 6)

def w1_check():
    regs = [WR(i,jj)+d for i in range(3) for jj in range(4) for d in range(3)]
    o = [[f"v_or_b32 v244, v{regs[0]}, v{regs[1]}"]]
    for k in range(2, len(regs), 2): o.append([f"v_or3_b32 v244, v244, v{regs[k]}, v{regs[k+1]}"])
    t = f"v_and_b32 v244, 0x40004000, v244\nv_and_b32 v245, 0x7fff, v{WR(0,0)}\nv_cmp_ne_u32 vcc, 0, v244\nv_mov_b32 v246, {118<<7}\nv_cmp_le_u32 s[{sT0}:{sT0+1}], v246, v245\n"
    t += f"s_cmp_lg_u64 vcc, 0\ns_cselect_b32 s{sT0+2}, 1, 0\ns_cmp_lg_u64 s[{sT0}:{sT0+1}], 0\ns_cselect_b32 s{sT0+3}, 2, 0\ns_or_b32 s{sT0}, s{sT0+2}, s{sT0+3}\n"
    t += f"s_lshl_b32 s{sT0+1}, s{sWAVE}, 2\ns_add_u32 s{sT0+1}, s{sT0+1}, {SCR_MAX}\nv_mov_b32 v244, s{sT0}\nv_mov_b32 v245, s{sT0+1}\nds_write_b32 v245, v244"
    return o + [t.split("\n")]

def w1_scale(c):
    o = [[f"s_mul_i32 s{sNS}, s{sS}, 0x800080", f"s_mov_b32 s{sT0+6}, 0x07060302", f"s_mov_b32 s{sT0+7}, 0x05040100", "v_mov_b32 v248, 0x7fff7fff"]]
    lmask = sum(1 << B for B in range(24) if c.cls[B] == 'L')
    for i in range(3):
        t = f"s_mul_i32 s{sT0}, s{sWAVE}, 3\ns_add_u32 s{sT0}, s{sT0}, {i}\ns_lshr_b32 s{sT0+1}, s{sT0}, 3\ns_bfe_u32 s{sT0+2}, s{sT0}, 0x20001\ns_mul_i32 s{sT0+5}, s{sT0+2}, 6\ns_lshr_b32 s{sT0+5}, {lmask:#x}, s{sT0+5}\n"
        t += f"s_mul_i32 s{sT0+3}, s{sT0+2}, 18\ns_add_u32 s{sT0+1}, s{sT0+1}, s{sT0+3}\ns_cmp_ge_u32 s{sT0+1}, 56\ns_cselect_b32 s{sT0+3}, 16, 8\ns_cmp_ge_u32 s{sT0+1}, 53\ns_cselect_b32 s{sT0+4}, 16, 8\n"
        t += f"s_and_b32 s{sT0}, s{sT0}, 1\ns_lshl_b32 s{sT0}, s{sT0}, 3"
        for k in range(2): t += f"\ns_add_u32 s{sT0+3+k}, s{sT0+3+k}, s{sT0+1}\ns_lshl_b32 s{sT0+3+k}, s{sT0+3+k}, 10\ns_add_u32 s{sT0+3+k}, s{sT0+3+k}, s{sT0}\nv_add_u32 v{250+k}, s{sT0+3+k}, v{vB0}"
        o.append(t.split("\n"))
        for el in range(6):
            kinds = {c.cls[6*cg + el] for cg in range(4)}
            g = []
            if kinds == {'L'}: ex = f"s{sNS}"
            elif kinds == {'V'}: ex = None
            else: g += [f"s_bitcmp1_b32 s{sT0+5}, {el}", f"s_cselect_b32 s{sT0+4}, s{sNS}, 0"]; ex = f"s{sT0+4}"
            for a in range(2): g.append(f"v_perm_b32 v{244+a}, v{WR(i,2*a+1) + el//2}, v{WR(i,2*a) + el//2}, s{sT0+6 if el % 2 else sT0+7}")
            if ex is not None:
                for a in range(2): g.append(f"v_and_b32 v{246+a}, v248, v{244+a}")
                for a in range(2): g.append(f"v_pk_sub_u16 v{246+a}, v{246+a}, {ex} clamp")
                for a in range(2): g.append(f"v_bitop3_b32 v{244+a}, v{246+a}, v{244+a}, v248 bitop3:0xf4")
            g.append(f"ds_write_b64 v{250 + (el > 0)}, v[244:245] offset:{3072*el}")
            o.append(g)
    return o

def prologue(e, c, st):
    e("s_cmp_ge_u32 s2, 256"); e.raw("s_cbranch_scc1 L_end")
    e("s_load_dwordx16 s[48:63], s[0:1], 0\ns_load_dwordx2 s[64:65], s[0:1], 64")
    e(f"v_and_b32 v{vLANE}, 63, v0\nv_lshrrev_b32 v{vT}, 6, v0\nv_lshlrev_b32 v{vB0}, 4, v{vLANE}")
    e(f"v_readfirstlane_b32 s{sWAVE}, v{vT}")
    e(f"v_add_u32 v{vB1}, 0x10000, v{vB0}\nv_mov_b32 v{vONE}, 1\nv_lshrrev_b32 v{vHALF}, 5, v{vLANE}")
    if c.remap:
        e(f"s_and_b32 s{sT0}, s2, 7\ns_lshl_b32 s{sT0}, s{sT0}, 5\ns_lshr_b32 s{sT0+1}, s2, 3\ns_add_u32 s3, s{sT0}, s{sT0+1}")
    else: e("s_mov_b32 s3, s2")
    e(f"s_and_b32 s{sX0}, s3, 15\ns_lshl_b32 s{sX0}, s{sX0}, 5\ns_lshr_b32 s{sY0}, s3, 4\ns_lshl_b32 s{sY0}, s{sY0}, 5")
    e(f"s_and_b32 s{sREP}, s2, {NREP-1}\ns_mov_b32 s{sS}, {S0}\ns_mov_b32 s{sFLAG}, 0")
    e(f"s_lshl_b32 s{sMA}, s{sWAVE}, 10\ns_add_u32 s{sMB}, s{sMA}, 8192")
    e(f"s_lshl_b32 s{sT0}, s{sY0}, 9\ns_add_u32 s{sT0}, s{sT0}, s{sX0}\ns_sub_u32 s{sT0}, s{sT0}, 513\ns_mul_i32 s{sDMA}, s{sT0}, 192")
    e(f"v_and_b32 v250, 15, v{vLANE}\nv_mul_u32_u24 v250, 12, v250\nv_bfe_u32 v251, v{vLANE}, 4, 1\nv_lshlrev_b32 v251, 1, v251\nv_add_u32 v251, v251, v{vHALF}\nv_mul_u32_u24 v251, {4*768}, v251\nv_add_u32 v250, v250, v251")
    e.raw("s_waitcnt lgkmcnt(0)")
    srd(e, sDW, 50, 1728); srd(e, sW1, 52, 73728)
    for i in range(2):
        e(f"s_mov_b32 m0, {SCR_DW}\ns_nop 0\nbuffer_load_dwordx4 v{vB0}, s[{sDW}:{sDW+3}], 0 offen offset:{1024*i} lds")
    for i in range(3):
        e(f"s_mul_i32 s{sT0}, s{sWAVE}, 3\ns_add_u32 s{sT0}, s{sT0}, {i}")
        e(f"s_lshr_b32 s{sT0+1}, s{sT0}, 3\ns_mul_i32 s{sT0+1}, s{sT0+1}, {32*768}")
        e(f"s_and_b32 s{sT0+2}, s{sT0}, 1\ns_mul_i32 s{sT0+2}, s{sT0+2}, {16*768}\ns_add_u32 s{sT0+1}, s{sT0+1}, s{sT0+2}")
        e(f"s_bfe_u32 s{sT0+2}, s{sT0}, 0x20001\ns_mul_i32 s{sT0+2}, s{sT0+2}, 192\ns_add_u32 s{sT0+1}, s{sT0+1}, s{sT0+2}")
        for jj in range(4):
            e(f"buffer_load_dwordx3 {R(WR(i,jj), 3)}, v250, s[{sW1}:{sW1+3}], s{sT0+1} offen offset:{768*jj}")
    st(e, 'wiss')
    for (off, add, o0) in ((vOFA, 0, 224), (vOFB, 512, 225)):
        e(f"s_lshl_b32 s{sT0}, s{sWAVE}, 6\ns_add_u32 s{sT0}, s{sT0}, {add}")
        e(f"v_add_u32 v217, s{sT0}, v{vLANE}")
        e(f"v_cmp_le_u32 vcc, 416, v217\ns_nop 1\nv_cndmask_b32 v218, 0, 1, vcc")
        e(f"v_mul_u32_u24 v219, 416, v218\nv_sub_u32 v219, v217, v219")
        e(f"v_mul_u32_u24 v220, 5462, v219\nv_lshrrev_b32 v220, 16, v220")
        e(f"v_mul_u32_u24 v221, 12, v220\nv_sub_u32 v221, v219, v221")
        e(f"v_bfe_u32 v222, v220, 2, 2\nv_xor_b32 v221, v221, v222")
        e(f"v_lshl_add_u32 v222, v218, 9, v220\nv_mul_u32_u24 v222, 192, v222\nv_lshl_add_u32 v222, v221, 4, v222")
        e(f"v_add_u32 v223, s{sX0}, v220\nv_subrev_u32 v223, 1, v223\nv_mov_b32 v221, {OOB:#x}")
        e(f"v_cmp_gt_u32 vcc, 512, v223\nv_cmp_gt_u32 s[{sT0}:{sT0+1}], 34, v220\ns_and_b64 vcc, vcc, s[{sT0}:{sT0+1}]")
        e(f"v_cmp_gt_u32 s[{sT0}:{sT0+1}], v217, v{vONE}\nv_mov_b32 v226, 832\nv_cmp_gt_u32 s[{sT0}:{sT0+1}], v226, v217\ns_and_b64 vcc, vcc, s[{sT0}:{sT0+1}]\ns_nop 1\nv_cndmask_b32 v{off}, v221, v222, vcc")
        e(f"v_add_u32 v222, s{sDMA}, v222\nv_add_u32 v223, s{sY0}, v218\nv_cmp_lt_u32 s[{sT0}:{sT0+1}], 0, v223\ns_and_b64 vcc, vcc, s[{sT0}:{sT0+1}]\ns_nop 1\nv_cndmask_b32 v{o0}, v221, v222, vcc")
    srd(e, sX, 48, XBYTES)
    if c.xbar: e("s_barrier")
    xg = dma_ops(0, True, 224, 225) + sum((dma_ops(t) for t in range(1, 5)), [])
    for g in xg[:c.x0]:
        for l in g: e(l)
    e0 = e
    class Spread:
        def __init__(self): self.n = 0; self.q = [[l.replace(f"s{sT0+1}", "s67").replace(f"s{sT0}", "s66") for l in g] for g in xg[c.x0:]]
        def __call__(self, t):
            e0(t); self.n += t.count("\n") + 1
            if self.q and self.n >= c.xsp and "s_cmp" not in t.split("\n")[-1] and "s_bitcmp" not in t:
                self.n = 0
                for l in self.q.pop(0): e0(l)
                if not self.q: st(e0, 'xiss')
        def __getattr__(self, k): return getattr(e0, k)
    e = Spread()
    srd(e, sW2, 54, 73728); srd(e, sGB, 58, 768); srd(e, sDBG, 62, 256); srd(e, sWS, 64, WSBYTES)
    lut_build(e, True, 208)
    e(f"v_and_b32 v217, 3, v{vLANE}\nv_bfe_u32 v218, v{vLANE}, 2, 2\nv_lshl_add_u32 v217, v217, 2, v218\nv_bfe_u32 v218, v{vLANE}, 4, 1")
    e(f"s_and_b32 s{sT0}, s{sWAVE}, 1\ns_lshl_b32 s{sT0}, s{sT0}, 4")
    for dx in range(3):
        e(f"v_add_u32 v219, s{sT0}, v217\nv_add_u32 v219, {dx}, v219")
        e(f"v_bfe_u32 v220, v219, 2, 2\nv_lshlrev_b32 v220, 4, v220\nv_mul_u32_u24 v219, 192, v219\nv_add_u32 v219, v219, v220")
        e(f"v_mul_u32_u24 v220, {ROWL}, v218\nv_add_u32 v{vCB+dx}, v219, v220")
    e(f"v_bfe_u32 v232, v{vLANE}, 2, 1\nv_bfe_u32 v233, v{vLANE}, 3, 1\nv_and_b32 v234, 3, v{vLANE}\nv_lshl_add_u32 v235, v233, 2, v234\nv_lshrrev_b32 v236, 4, v{vLANE}")
    def waddr(dst, dyreg, dxexpr):
        e(f"v_mul_u32_u24 v237, 3, v{dyreg}\nv_add_u32 v237, {dxexpr}, v237\nv_mul_u32_u24 v237, 96, v237\nv_add_u32 v237, v237, v235")
        e(f"v_lshlrev_b32 v237, 1, v237\nv_add_u32 v237, {SCR_DW}, v237\nv_mov_b32 v238, {SCR_DW+1792}")
        e(f"v_cmp_gt_u32 vcc, 3, v{dyreg}\ns_nop 1\nv_cndmask_b32 v{dst}, v238, v237, vcc")
    e(f"v_and_b32 v239, 1, v236\nv_lshlrev_b32 v239, 1, v239\nv_sub_u32 v239, v239, v232")
    waddr(240, 239, f"v{vHALF}")
    e("v_add_u32 v239, 1, v239"); waddr(241, 239, f"v{vHALF}")
    e("v_sub_u32 v239, v236, v232"); waddr(242, 239, "2")
    e(f"v_xor_b32 v237, 1, v234\nv_lshl_or_b32 v237, v237, 2, v234\nv_mul_u32_u24 v{vIDX}, 0x1111, v237")
    e(f"v_subrev_u32 v243, 1, v233\nv_not_b32 v244, v243")
    e(f"v_and_b32 v245, 1, v235\nv_lshlrev_b32 v245, 4, v245\nv_lshrrev_b32 v237, 1, v235")
    for r in range(4):
        e(f"v_cmp_eq_u32 vcc, {r}, v237\ns_nop 1\nv_cndmask_b32 v{246+r}, 0, -1, vcc")
    e.wait(vm=len(e0.vm) - 2)
    for cb in range(12):
        e(f"ds_read_u16 v{A1+4*cb}, v240 offset:{16*cb}\nds_read_u16 v{A1+4*cb+2}, v241 offset:{16*cb}\nds_read_u16 v{A2+4*cb}, v242 offset:{16*cb}")
    for cb in range(12):
        a = A1 + 4*cb; b = A2 + 4*cb
        e(f"v_and_b32 v{a+1}, v244, v{a}\nv_and_b32 v{a}, v243, v{a}\nv_and_b32 v{a+3}, v244, v{a+2}\nv_and_b32 v{a+2}, v243, v{a+2}")
        e(f"v_lshlrev_b32 v{b}, v245, v{b}\nv_and_b32 v{b+1}, v247, v{b}\nv_and_b32 v{b+2}, v248, v{b}\nv_and_b32 v{b+3}, v249, v{b}\nv_and_b32 v{b}, v246, v{b}")
    st(e, 'cvA')
    e(f"s_lshl_b32 s{sLNO}, s2, 4\ns_add_u32 s{sLNO}, s{sLNO}, s{sWAVE}\ns_mul_i32 s{sLNO}, s{sLNO}, 6144")
    e(f"s_lshr_b32 s{sT0+1}, s{sWAVE}, 1\ns_lshl_b32 s{sT0+1}, s{sT0+1}, 1\ns_add_u32 s{sT0}, s{sY0}, s{sT0+1}\ns_lshl_b32 s{sT0}, s{sT0}, 9\ns_add_u32 s{sT0}, s{sT0}, s{sX0}")
    e(f"s_and_b32 s{sT0+1}, s{sWAVE}, 1\ns_lshl_b32 s{sT0+1}, s{sT0+1}, 4\ns_add_u32 s{sT0}, s{sT0}, s{sT0+1}\ns_mul_i32 s{sTILE}, s{sT0}, 192")
    for s in range(1, 4): e(f"s_add_u32 s{sTILE+s}, s{sTILE}, {8*s*ROWB}")

    assert not e.q
    e = e0
    g = w1_check() + w1_scale(c)
    for x in g[:c.pre_n]:
        for l in x: e(l)
    g = g[c.pre_n:]
    st(e, 'scl')
    e.wait(lgkm=0, vm=0); e("s_barrier")
    st(e, 'go0')
    sc = Sched(); conv(sc, 0, 0, 1)
    for k, x in enumerate(g): group(sc, -1.9 + 14.5*k/len(g), x)
    sc.emit(e)
    st(e, 'conv0')
    e.label("L_image")
    e.wait(lgkm=0); e("s_barrier")
    e.raw(f"s_cmp_lg_u32 s{sFLAG}, 0\ns_cbranch_scc1 L_go")
    e(f"v_mov_b32 v233, {SCR_MAX}\nds_read_b128 v[236:239], v233\nds_read_b128 v[240:243], v233 offset:16")
    e("v_or3_b32 v236, v236, v237, v238\nv_or3_b32 v236, v236, v239, v240\nv_or3_b32 v236, v236, v241, v242\nv_or_b32 v236, v236, v243")
    e(f"v_readfirstlane_b32 s{sT0}, v236\ns_nop 3\ns_cmp_eq_u32 s{sT0}, 2")
    e.raw("s_cbranch_scc1 L_go")
    SM2 = SCR_MAX + 64
    e(f"v_mov_b32 v232, 0\ns_mov_b32 s{sT0}, 0x7fff7fff")
    for i in range(3):
        for jj in range(4):
            for d in range(3):
                e(f"v_and_b32 v233, s{sT0}, v{WR(i,jj)+d}\nv_pk_max_u16 v232, v232, v233")
    e("v_lshrrev_b32 v233, 16, v232\nv_and_b32 v232, 0xffff, v232\nv_max_u32 v232, v232, v233")
    wave_reduce_dpp(e, "v_max_u32", 232)
    e(f"v_readlane_b32 s{sT0}, v232, 63\ns_lshl_b32 s{sT0+1}, s{sWAVE}, 2\ns_add_u32 s{sT0+1}, s{sT0+1}, {SM2}")
    e(f"s_nop 2\nv_mov_b32 v232, s{sT0}\nv_mov_b32 v233, s{sT0+1}\nds_write_b32 v233, v232")
    e.wait(lgkm=0); e("s_barrier")
    e(f"v_mov_b32 v233, {SM2}\nds_read_b128 v[236:239], v233\nds_read_b128 v[240:243], v233 offset:16")
    e("v_max_u32 v236, v236, v237\nv_max3_u32 v236, v236, v238, v239\nv_max3_u32 v236, v236, v240, v241\nv_max3_u32 v236, v236, v242, v243")
    e(f"v_readfirstlane_b32 s{sT0}, v236\ns_nop 3\ns_lshr_b32 s{sT0}, s{sT0}, 7\ns_max_u32 s{sT0}, s{sT0}, 23\ns_sub_u32 s{sS}, s{sT0}, 23\ns_mov_b32 s{sFLAG}, 1")
    lut_build(e, True, 208)
    for x in w1_scale(c):
        for l in x: e(l)
    e.raw("s_branch L_image")
    e.label("L_go")
    for j in range(24): e(f"v_mov_b32 v{SUM+j}, 0")

def ticket(phase):
    n = 254
    lane0 = [f"v_min_u32 v{vT}, 1, v{vLANE}", f"v_lshlrev_b32 v{vT}, 31, v{vT}"]
    if phase == 0:
        return lane0 + [f"s_lshl_b32 s{sT0}, s{sREP}, 2", f"s_cmp_eq_u32 s{sWAVE}, 7", f"s_cselect_b32 s{sT0}, s{sT0}, 0x40000000", f"v_mov_b32 v{n}, 1",
                        f"buffer_atomic_add v{n}, v{vT}, s[{sDBG}:{sDBG+3}], s{sT0} offen sc0"]
    if phase == 1:
        return [f"v_readfirstlane_b32 s{sTK}, v{n}", f"v_mov_b32 v{n}, 0", f"v_mov_b32 v{n+1}, 0", f"v_lshlrev_b32 v{vT}, 3, v{vLANE}",
                f"s_cmp_eq_u32 s{sWAVE}, 7", f"s_cselect_b32 s{sTK}, s{sTK}, 1", f"s_mul_i32 s{sT0}, s{sREP}, 1536", f"s_add_u32 s{sT0}, s{sT0}, {WS_SUM}",
                f"s_lshl_b32 s{sT0+1}, s{sREP}, 7", f"s_add_u32 s{sT0+1}, s{sT0+1}, {WS_CNT}", f"s_cmp_eq_u32 s{sTK}, 0", f"s_cselect_b32 s{sT0}, s{sT0}, 0x40000000", f"s_cselect_b32 s{sT0+1}, s{sT0+1}, 0x40000000"] + \
               [f"buffer_store_dwordx2 {R(n,2)}, v{vT}, s[{sWS}:{sWS+3}], s{sT0} offen offset:{512*k} sc0 sc1" for k in range(3)] + \
               [f"buffer_store_dword v{n}, v{n+1}, s[{sWS}:{sWS+3}], s{sT0+1} offen sc0 sc1"]
    return lane0 + [f"s_lshl_b32 s{sT0}, s{sREP}, 2", f"s_cmp_eq_u32 s{sTK}, 0", f"s_cselect_b32 s{sT0}, s{sT0}, 0x40000000", f"v_mov_b32 v{n}, 1",
                    f"buffer_atomic_add v{n}, v{vT}, s[{sDBG}:{sDBG+3}], s{sT0} offen offset:64"]

def group(sc, t, lines):
    for l in lines: sc.add(t, l)

def conv(sc, s, t0, dt):
    g = f"s_lshr_b32 s{sT0}, s{sWAVE}, 1\ns_add_u32 s{sT0}, s{sT0}, {(4*s) % 5}\ns_add_u32 s{sT0+1}, s{sT0}, 1\n"
    for k in range(2):
        g += f"s_cmp_ge_u32 s{sT0+k}, 5\ns_cselect_b32 s{sT0+2}, 5, 0\ns_sub_u32 s{sT0+k}, s{sT0+k}, s{sT0+2}\ns_mul_i32 s{sT0+k}, s{sT0+k}, {PAIRB}\n"
    g += f"s_sub_u32 s{sT0+1}, s{sT0+1}, s{sT0}\ns_add_u32 s{sT0}, s{sT0}, {RING}\nv_mul_lo_u32 v{vT}, v{vHALF}, s{sT0+1}\nv_add_u32 v{vT}, s{sT0}, v{vT}"
    group(sc, t0 - 3.5*dt, g.split("\n") + [f"v_add_u32 v{vAD+dx}, v{vT}, v{vCB+dx}" for dx in range(3)])
    order = [(b, a) for b in range(4) for a in range(3)]
    for k, (b, a) in enumerate(order):
        cb = 4*a + b; buf = CBUF + 12*(k % 3); acc = cacc(cb)
        if a == 0 and b > 0:
            for dx in range(3): sc.add(t0 + (k - 2.05)*dt, f"v_xor_b32 v{vAD+dx}, {16*(b ^ (b-1))}, v{vAD+dx}")
        sc.add(t0 + (k - 2)*dt, f"ds_read_b128 {R(buf+8,4)}, v{vAD+2} offset:{64*a}")
        sc.add(t0 + (k - 2)*dt, f"ds_read_b128 {R(buf,4)}, v{vAD} offset:{64*a}")
        sc.add(t0 + (k - 2)*dt, f"ds_read_b128 {R(buf+4,4)}, v{vAD+1} offset:{64*a}")
        sc.add(t0 + (k - 0.2)*dt, f"v_mfma_f32_16x16x32_bf16 {R(acc,4)}, {R(A2+4*cb,4)}, {R(buf+8,4)}, 0")
        sc.add(t0 + (k - 0.1)*dt, f"v_smfmac_f32_16x16x64_bf16 {R(acc,4)}, {R(A1+4*cb,4)}, {R(buf,8)}, v{vIDX}")
        for i in range(4):
            tt = t0 + (k + 1.5 + 0.01*i)*dt
            if k == 0 and i == 0:
                sc.add(tt, f"v_mov_b32 v{S1}, v{acc}"); sc.add(tt, f"v_mul_f32 v{S2}, v{acc}, v{acc}")
            else:
                sc.add(tt, f"v_add_f32 v{S1}, v{acc+i}, v{S1}"); sc.add(tt, f"v_fmac_f32 v{S2}, v{acc+i}, v{acc+i}")

def layernorm(sc, LN, base):
    g = f"v_permlane32_swap_b32 v{S1}, v{S2}\nv_add_f32 v{S1}, v{S1}, v{S2}\nv_mov_b32 v{S2}, v{S1}\nv_permlane32_swap_b32 v{S1}, v{S2}\n"
    g += f"v_mul_f32 v{S1}, {0x3c2aaaab:#x}, v{S1}\nv_mul_f32 v{S2}, {0x3c2aaaab:#x}, v{S2}\nv_fma_f32 v{S2}, -v{S1}, v{S1}, v{S2}\nv_max_f32 v{S2}, 0, v{S2}\n"
    g += f"v_add_f32 v{S2}, {0x3727c5ac:#x}, v{S2}\nv_rsq_f32 v{S2}, v{S2}\nv_mul_f32 v{S2}, {K_NEGK:#x}, v{S2}\nv_mul_f32 v{S1}, v{S1}, v{S2}"
    group(sc, base + 0.1, g.split("\n"))
    for t3 in range(3):
        tb = base + 0.2 + 0.6*t3
        for cb in range(4*t3, 4*t3 + 4):
            for r in range(4): sc.add(tb, f"v_fma_f32 v{cacc(cb)+r}, v{cacc(cb)+r}, v{S2}, -v{S1}")
        for a in range(2):
            for z in range(2):
                cb = 4*t3 + 2*a + z
                for i in range(2): sc.add(tb + 0.3, f"v_cvt_pk_bf16_f32 v{LN+12*z+4*t3+2*a+i}, v{cacc(cb)+2*i}, v{cacc(cb)+2*i+1}")
        for k in range(4*t3, 4*t3 + 4): sc.add(tb + 0.4, f"v_permlane16_swap_b32 v{LN+k}, v{LN+12+k}")

def wread(sl, F):
    a = fragA(F); return f"ds_read_b128 {R(sl,4)}, v{vB0 if a < 65536 else vB1} offset:{a & 65535}"

vMX = (14, 15)
def wread2(sl, blk, t):
    a, b = blk
    if a == b: return wread(sl, 3*a + t)
    return f"ds_read_b128 {R(sl,4)}, v{vMX[0] if b > a else vMX[1]} offset:{fragA(3*min(a,b) + t)}"

def gemm1(sc, c, LN, base):
    nw = 3; lead = 2; nT = 0; f = [0]
    order = order1(c)
    slot = lambda bi: POOL + 8*((bi + 6) % 8)
    def kstep(bi, t, tm, tr):
        B = order[bi]; d = slot(bi); s_ = W + 4*(f[0] % nw); f[0] += 1
        sc.add(tr, wread(s_, 3*B + t))
        for z in range(2):
            sc.add(tm + z/6, f"v_mfma_f32_16x16x32_bf16 {R(d+4*z,4)}, {R(LN+12*z+4*t,4)}, {R(s_,4)}, {'0' if t == 0 else R(d+4*z,4)}")
    times = [base + 0.70 + 0.6*t + 0.2*bi for t in range(3) for bi in range(2)] + [base + bi + 0.3*(bi == 2) + 2*t/6*(0.7 if bi == 2 else 1) for bi in range(2, 24) for t in range(3)]
    seq = [(bi, t) for t in range(3) for bi in range(2)] + [(bi, t) for bi in range(2, 24) for t in range(3)]
    done = set()
    for i, (bi, t) in enumerate(seq):
        kstep(bi, t, times[i], times[i - lead] + 0.003 if i >= lead else base + 0.15)
        if t < 2: continue
        B = order[bi]; d = slot(bi); acc = SUM + B
        tb = base + max(bi, 1) + 1 + (0.35 if bi < 2 else 0)
        if c.cls[B] == 'L':
            ng = [1,1,2,1,1,2]; r = d
            for k in range(6):
                ts = base + max(bi, 1) + 1 + (k+1)/6 + (2/6 if bi < 2 else 0)
                for _ in range(ng[k]):
                    sc.add(ts - 0.002, f"v_lshlrev_b32_sdwa v{r}, v{vONE}, v{r} {SDWA1}")
                    sc.add(ts + 0.002, f"ds_read_u16_d16_hi v{r}, v{r}")
                    sc.add(ts + c.gl1, f"v_add_f32 v{acc}, v{r}, v{acc}")
                    r += 1
        else:
            n = 1
            while bi + n < 24 and c.cls[order[bi + n]] != 'V': n += 1
            end = base + bi + n + 1.2 if bi + n < 24 else base + c.vend
            span = end - (tb + 0.2)
            tt = T1 + 8*(nT % 2); nT += 1
            stages = [lambda r, t: f"v_fmaak_f32 v{t}, v{r}, v{r}, {K_A:#x}", lambda r, t: f"v_mul_f32 v{t}, v{r}, v{t}", lambda r, t: f"v_exp_f32 v{t}, v{t}",
                      lambda r, t: f"v_add_f32 v{t}, 1.0, v{t}", lambda r, t: f"v_rcp_f32 v{t}, v{t}", lambda r, t: f"v_mul_f32 v{t}, v{r}, v{t}", lambda r, t: f"v_fmac_f32 v{acc}, v{t}, v{t}"]
            wt = [1,1,2,1,2,1,1]; cum = 0
            for hh in range(2):
                for si, fn in enumerate(stages):
                    for k in range(4): sc.add(tb + 0.2 + span*(cum + wt[si]*k/4)/18, fn(d + 4*hh + k, tt + 4*hh + k))
                    cum += wt[si]

def ln_mem(op, tile, base, mod=''):
    o = []
    for k in range(6):
        o.append([f"s_add_u32 s{sT0+2}, s{sLNO}, {tile*8*6144 + 1024*k}", f"buffer_{op}_dwordx4 {R(base+4*k,4)}, v{vB0}, s[{sWS}:{sWS+3}], s{sT0+2} offen{mod}"])
    return o

WR2 = 40; GBR = 88
def mixed_waves(c):
    m = [w for w in range(8) if c.mix and c.cls[3*w+1] == 'V']
    assert m == list(range(len(m))) and all(c.cls[B] == 'L' or B % 3 == 1 for B in range(24)) or not c.mix
    return len(m)
sHB = 66
def w2_loads(c):
    nm = mixed_waves(c)
    o = [[f"v_lshrrev_b32 v102, 4, v{vLANE}", f"v_mul_u32_u24 v100, 48, v102", f"v_mul_u32_u24 v102, {24*192}, v102", f"v_and_b32 v101, 15, v{vLANE}", f"v_mul_u32_u24 v101, 12, v101", f"v_add_u32 v101, v101, v102",
          f"s_mul_i32 s{sT0+5}, s{sWAVE}, 3", f"s_lshr_b32 s{sT0+4}, s{sWAVE}, 1", f"s_mul_i32 s{sT0+4}, s{sT0+4}, 90", f"s_add_u32 s{sT0+5}, s{sT0+5}, s{sT0+4}",
          f"s_cmp_lt_u32 s{sWAVE}, {nm}", f"s_cselect_b32 s{sMIX}, 1, 0"]]
    for i in range(3):
        for jj in range(4):
            pre = []
            if jj % 2 == 0:
                if i < 2 and jj == 2: pre = [f"s_xor_b32 s{sT0+3}, s{sMIX}, {i}", f"s_add_u32 s{sT0+3}, s{sT0+3}, s{sT0+5}"]
                else: pre = [f"s_add_u32 s{sT0+3}, s{sT0+5}, {i}"]
                pre += [f"s_mul_i32 s{sT0+4}, s{sT0+3}, 192", f"s_lshl_b32 s{sT0+3}, s{sT0+3}, 1"]
            o.append(pre + [f"buffer_load_dwordx3 {R(WR2+16*i+4*jj,3)}, v101, s[{sW2}:{sW2+3}], s{sT0+4} offen offset:{6*192*jj}",
                     f"buffer_load_ushort v{GBR+4*i+jj}, v100, s[{sGB}:{sGB+3}], s{sT0+3} offen offset:{12*jj}"])
    o.append([f"s_lshl_b32 s{sT0+3}, s{sREP}, 2", f"v_mov_b32 v103, 0", f"buffer_load_dword v102, v103, s[{sDBG}:{sDBG+3}], s{sT0+3} offen offset:64 sc0 sc1"])
    return o

def order1(c):
    V = [B for B in range(24) if c.cls[B] == 'V']; L = [B for B in range(24) if c.cls[B] == 'L']
    o = []; acc = c.vphase
    for k in range(24):
        acc += len(V0 := [B for B in range(24) if c.cls[B] == 'V'])
        if acc >= 24 and V: acc -= 24; o.append(V.pop(0))
        else: o.append(L.pop(0) if L else V.pop(0))
    return o

def units(c):
    if not c.mix:
        V = [B for B in range(24) if c.cls[B] == 'V']; L = [B for B in range(24) if c.cls[B] == 'L']
        M = [(B, B) for B in V]; P = [(B, B) for B in L]; big = M
    else:
        V = [B for B in range(24) if c.cls[B] == 'V']
        assert all(c.cls[B-1] == 'L' and B <= 17 for B in V)
        M = sum(([(B, B-1), (B-1, B)] for B in V), [])
        P = [(B, B) for B in range(24) if c.cls[B] == 'L' and B+1 not in V]
    U = []
    if c.mix:
        nMM = len(M) - 12 if len(M) > 12 else 0; nPP = 12 - len(M) if len(M) < 12 else 0
        acc = 6
        for u in range(12):
            acc += nMM + nPP
            if acc >= 12:
                acc -= 12; U.append((M.pop(0), M.pop(0)) if nMM else (P.pop(0), P.pop(0)))
            else: U.append((M.pop(0), P.pop(0)))
    else:
        nLL = 12 - len(M); acc = 0
        for u in range(12):
            acc += nLL
            if acc >= 12 or not M: acc -= 12; U.append((P.pop(0), P.pop(0)))
            else: U.append((M.pop(0), P.pop(0)))
    assert not M and not P
    return U

def UNP(L, o): return 16 + 6*L + o
def sync1(e, c, st):
    for k in range(0, 24, 2): e(f"v_permlane16_swap_b32 v{SUM+k}, v{SUM+k+1}")
    for k in range(0, 24, 2): e(f"v_add_f32 v{SUM+k}, v{SUM+k}, v{SUM+k+1}")
    for k in range(0, 24, 4): e(f"v_permlane32_swap_b32 v{SUM+k}, v{SUM+k+2}")
    for k in range(0, 24, 4): e(f"v_add_f32 v{SUM+k}, v{SUM+k}, v{SUM+k+2}")
    e(f"s_mul_i32 s{sT0}, s{sWAVE}, 1536\ns_add_u32 s{sT0}, s{sT0}, {RED}\nv_lshlrev_b32 v160, 2, v{vLANE}\nv_add_u32 v160, s{sT0}, v160")
    for k in range(6): e(f"ds_write_b32 v160, v{SUM+4*k} offset:{256*k}")
    e(f"s_lshl_b32 s{sT0}, s{sREP}, 2\nv_mov_b32 v161, 0\ns_mov_b32 s{sT0+1}, 0x100000")
    e(f"v_readfirstlane_b32 s{sT0+2}, v102\ns_nop 3\ns_cmp_lg_u32 s{sT0+2}, 0")
    e.raw("s_cbranch_scc1 L_flagged")
    e.label("L_flag")
    e(f"buffer_load_dword v162, v161, s[{sDBG}:{sDBG+3}], s{sT0} offen offset:64 sc0 sc1")
    e(f"v_readfirstlane_b32 s{sT0+2}, v162\ns_sub_u32 s{sT0+1}, s{sT0+1}, 1\ns_cmp_eq_u32 s{sT0+1}, 0")
    e.raw("s_cbranch_scc1 L_flagged")
    e(f"s_cmp_eq_u32 s{sT0+2}, 0")
    e.raw("s_cbranch_scc1 L_flag")
    e.label("L_flagged")
    e.wait(lgkm=0); e("s_barrier"); st(e, 'B1')
    e.raw(f"s_cmp_ge_u32 s{sWAVE}, 6\ns_cbranch_scc1 L_noat")
    e(f"v_lshlrev_b32 v160, 2, v0\nv_add_u32 v161, {RED}, v160")
    for w in range(8): e(f"ds_read_b32 v{164+w}, v161 offset:{1536*w}")
    for w in range(1, 8): e(f"v_add_f32 v164, v164, v{164+w}")
    e(f"s_mul_i32 s{sT0}, s{sREP}, 1536\ns_add_u32 s{sT0}, s{sT0}, {WS_SUM}")
    e.raw(f"buffer_atomic_add_f32 v164, v160, s[{sWS}:{sWS+3}], s{sT0} offen")
    e.label("L_noat")
    lut_build(e, False, 176); st(e, 'lut')
    for L in range(12): e(f"v_lshlrev_b32 v{GBR+L}, 16, v{GBR+L}")
    for L in range(12):
        for o in (0, 1, 2, 3, 5, 4):
            src = WR2 + 4*L + o//2
            e(f"v_and_b32 v{UNP(L,o)}, 0xffff0000, v{src}" if o % 2 else f"v_lshlrev_b32 v{UNP(L,o)}, 16, v{src}")
        for o in range(6):
            e(f"v_mul_f32 v{204+o}, v{UNP(L,o)}, v{GBR}" if L == 0 else f"v_fmac_f32 v{204+o}, v{UNP(L,o)}, v{GBR+L}")
    for k in range(0, 6, 2): e(f"v_permlane16_swap_b32 v{204+k}, v{205+k}")
    for k in range(0, 6, 2): e(f"v_add_f32 v{204+k}, v{204+k}, v{205+k}")
    e("v_mov_b32 v209, v208\nv_permlane32_swap_b32 v204, v206\nv_permlane32_swap_b32 v208, v209\nv_add_f32 v204, v204, v206\nv_add_f32 v208, v208, v209")
    e(f"v_and_b32 v200, 15, v{vLANE}\nv_mul_u32_u24 v200, 6, v200\nv_lshrrev_b32 v201, 4, v{vLANE}\nv_add_u32 v202, v200, v201\nv_and_b32 v201, 1, v201\nv_add3_u32 v203, v200, v201, 4")
    e(f"s_mul_i32 s{sT0}, s{sWAVE}, 384\ns_add_u32 s{sT0}, s{sT0}, {REDB}\nv_lshl_add_u32 v202, v202, 2, s{sT0}\nv_lshl_add_u32 v203, v203, 2, s{sT0}")
    e("ds_write_b32 v202, v204\nds_write_b32 v203, v208")
    e.wait(lgkm=0, vm=0); e("s_barrier"); st(e, 'B2')
    e.raw(f"s_cmp_lg_u32 s{sWAVE}, 0\ns_cbranch_scc1 L_nocnt")
    e(f"s_lshl_b32 s{sT0}, s{sREP}, 7\ns_add_u32 s{sT0}, s{sT0}, {WS_CNT}\nv_mov_b32 v200, 1\nv_mov_b32 v201, 0\ns_mov_b64 exec, 1")
    e.raw(f"buffer_atomic_add v200, v201, s[{sWS}:{sWS+3}], s{sT0} offen")
    e("s_mov_b64 exec, -1")
    e.label("L_nocnt")
    e.raw(f"s_cmp_lt_u32 s{sWAVE}, 6\ns_cbranch_scc1 L_nob2")
    e(f"v_subrev_u32 v200, 384, v0\nv_lshlrev_b32 v200, 2, v200\nv_add_u32 v201, {REDB}, v200")
    for w in range(8): e(f"ds_read_b32 v{204+w}, v201 offset:{384*w}")
    for w in range(1, 8): e(f"v_add_f32 v204, v204, v{204+w}")
    e(f"v_add_u32 v200, {B2F}, v200\nds_write_b32 v200, v204")
    e.label("L_nob2")
    e.wait(lgkm=0)
def setup2(c):
    class Rec:
        def __init__(self): self.l = []
        def __call__(self, t): self.l += [x for x in t.split("\n") if x]
    gs = []
    def grp(f): r = Rec(); f(r); gs.append(r.l)
    grp(lambda e: (srd(e, sOUT, sPOUT, XBYTES), srd(e, sG, sPG, 768)))
    grp(lambda e: e(f"v_add_u32 v{vB2}, 0x20000, v{vB0}\nv_lshrrev_b32 v104, 4, v{vLANE}\nv_mul_u32_u24 v104, 192, v104\nv_and_b32 v105, 15, v{vLANE}\nv_mul_u32_u24 v105, 12, v105\nv_add_u32 v{vOP}, v104, v105"))
    grp(lambda e: e(f"v_lshrrev_b32 v104, 4, v{vLANE}\ns_mul_i32 s{sT0}, s{sWAVE}, 3\ns_lshr_b32 s{sT0+1}, s{sWAVE}, 1\ns_mul_i32 s{sT0+1}, s{sT0+1}, 90\ns_add_u32 s{sT0}, s{sT0}, s{sT0+1}\nv_add_u32 v104, s{sT0}, v104\nv_and_b32 v105, 15, v{vLANE}\nv_mul_u32_u24 v105, 6, v105\nv_add_u32 v104, v104, v105\nv_lshlrev_b32 v104, 1, v104\nbuffer_load_ushort v111, v104, s[{sG}:{sG+3}], 0 offen"))
    grp(lambda e: e(f"v_bfe_u32 v104, v{vLANE}, 1, 1\nv_mul_u32_u24 v104, 3072, v104\nv_add_u32 v{vMX[0]}, v104, v{vB0}\nv_sub_u32 v104, 3072, v104\nv_add_u32 v{vMX[1]}, v104, v{vB0}"))
    grp(lambda e: e(f"v_lshlrev_b32 v7, 7, v{vLANE}\nv_lshrrev_b32 v104, 4, v{vLANE}\nv_min_u32 v104, 1, v104\nv_lshlrev_b32 v104, 31, v104\nv_or_b32 v7, v7, v104"))
    r = Rec(); image_addresses(r, c)
    n = len(r.l) // 3
    gs += [r.l[:n], r.l[n:2*n], r.l[2*n:]]
    return gs

def sum_loads(e, c):
    e(f"s_mul_i32 s{sT0}, s{sWAVE}, 192\ns_add_u32 s{sT0}, s{sT0}, {WS_SUM}\nv_lshlrev_b32 v110, 2, v{vLANE}")
    for r in range(NREP):
        e.raw(f"buffer_load_dword v{101+r}, v110, s[{sWS}:{sWS+3}], s{sT0} offen{c.sum_mod}\ns_add_u32 s{sT0}, s{sT0}, 1536")
OKW = MEANR + 64
def poll_ops():
    return [f"v_and_b32 v110, {NREP-1}, v{vLANE}", f"v_lshlrev_b32 v110, 7, v110", f"s_mov_b32 s{sT0+2}, {WS_CNT}", f"buffer_load_dword v109, v110, s[{sWS}:{sWS+3}], s{sT0+2} offen sc0 sc1"]
def early_poll(e):
    e.raw(f"s_cmp_lg_u32 s{sWAVE}, 1\ns_cbranch_scc1 L_nopoll")
    for l in poll_ops(): e.raw(l)
    e.label("L_nopoll")
def sync_early(e, c, st):
    st(e, 'pa')
    e(f"v_mov_b32 v110, {OKW}")
    e.raw(f"s_cmp_lg_u32 s{sWAVE}, 1\ns_cbranch_scc1 L_nook\ns_waitcnt vmcnt(0)")
    e(f"v_cmp_gt_u32 vcc, {256//NREP}, v109\ns_nop 4\ns_cmp_eq_u64 vcc, 0\ns_cselect_b32 s{sOK}, 1, 0\nv_mov_b32 v109, s{sOK}\nds_write_b32 v110, v109")
    e.label("L_nook")
    e.wait(lgkm=0); e("s_barrier"); st(e, 'pb')
    e(f"ds_read_b32 v109, v110")
def early_sums(c):
    o = [f"v_readfirstlane_b32 s{sOK}, v109", f"v_lshlrev_b32 v110, 2, v{vLANE}", f"s_mul_i32 s{sT0+3}, s{sWAVE}, 192", f"s_add_u32 s{sT0+3}, s{sT0+3}, {WS_SUM}", f"s_cmp_lg_u32 s{sOK}, 0", f"s_cselect_b32 s{sT0+3}, s{sT0+3}, {OOB:#x}"]
    return [o] + [[f"buffer_load_dword v{101+r}, v110, s[{sWS}:{sWS+3}], s{sT0+3} offen{c.sum_mod}", f"s_add_u32 s{sT0+3}, s{sT0+3}, 1536"] for r in range(NREP)]
def image_addresses(e, c):
    U = units(c); nm = mixed_waves(c)
    where = {blk: 2*u + H for u, p in enumerate(U) for H, blk in enumerate(p)}
    for i in range(3):
        pos = [where[(3*w+i, 3*w+(i^1 if i < 2 and w < nm else i))] for w in range(8)]
        lo = sum(pos[w] << (5*w) for w in range(4)); hi = sum(pos[w+4] << (5*w) for w in range(4))
        e(f"s_mov_b32 s{sT0+2}, {lo:#x}\ns_cmp_ge_u32 s{sWAVE}, 4\ns_cselect_b32 s{sT0+2}, {hi:#x}, s{sT0+2}\ns_and_b32 s{sT0}, s{sWAVE}, 3\ns_mul_i32 s{sT0}, s{sT0}, 5")
        e(f"s_lshr_b32 s{sT0+2}, s{sT0+2}, s{sT0}\ns_and_b32 s{sT0+1}, s{sT0+2}, 1\ns_lshl_b32 s{sT0+1}, s{sT0+1}, 3\ns_bfe_u32 s{sT0+2}, s{sT0+2}, 0x40001\ns_mul_i32 s{sT0+2}, s{sT0+2}, 6144\ns_add_u32 s{sT0+1}, s{sT0+1}, s{sT0+2}\ns_add_u32 s{(33,34,37)[i]}, s{sT0+1}, {W2L}")
def sync2(e, c, st):
    st(e, 'prew')
    e.raw(f"s_cmp_lg_u32 s{sOK}, 0\ns_cbranch_scc1 L_havesums")
    e.raw(f"s_cmp_lg_u32 s{sWAVE}, 1\ns_cbranch_scc1 L_arrived")
    e(f"s_mov_b32 s{sT0+1}, 0x100000")
    e.label("L_poll")
    for l in poll_ops(): e(l)
    e(f"v_cmp_gt_u32 vcc, {256//NREP}, v109\ns_sub_u32 s{sT0+1}, s{sT0+1}, 1\ns_cmp_eq_u32 s{sT0+1}, 0")
    e.raw("s_cbranch_scc1 L_arrived\ns_nop 4\ns_cbranch_vccnz L_poll")
    e.label("L_arrived")
    e("s_barrier")
    sum_loads(e, c)
    e.label("L_havesums")
    e.wait(vm=0); st(e, 'sld')
    for r in range(1, NREP): e(f"v_add_f32 v101, v101, v{101+r}")
    e(f"v_mov_b32 v103, {0x358637bd:#x}\nv_fmac_f32 v103, {K_INVK2:#x}, v101\nv_sqrt_f32 v103, v103")
    e(f"v_cmp_gt_u32 vcc, 48, v{vLANE}\ns_nop 1\nv_cndmask_b32 v104, 0, v103, vcc")
    wave_reduce_dpp(e, "v_add_f32", 104)
    e(f"s_lshl_b32 s{sT0+1}, s{sWAVE}, 2\ns_add_u32 s{sT0+1}, s{sT0+1}, {MEANR}\nv_mov_b32 v105, s{sT0+1}\ns_mov_b32 exec_lo, 0\ns_mov_b32 exec_hi, 0x80000000\nds_write_b32 v105, v104\ns_mov_b64 exec, -1")
    e(f"v_lshlrev_b32 v111, 16, v111\nv_mul_f32 v103, v103, v111\nv_lshrrev_b32 v104, 4, v{vLANE}\nv_lshlrev_b32 v104, 4, v104\ns_lshl_b32 s{sT0}, s{sMIX}, 6\nv_add_u32 v105, s{sT0}, v104\nv_subrev_u32 v106, s{sT0}, v104")
    for i in range(3):
        for jj in range(4):
            ad = 104 if (i == 2 or jj < 2) else (105 if i == 0 else 106)
            e(f"ds_bpermute_b32 v{GBR+4*i+jj}, v{ad}, v103 offset:{64*i+4*jj}")
    e.wait(lgkm=0); e("s_barrier"); st(e, 'B4')
    e(f"v_mov_b32 v105, {MEANR}\nds_read_b128 v[100:103], v105\nds_read_b128 v[104:107], v105 offset:16")
    e(f"v_and_b32 v110, 15, v{vLANE}\nv_mul_u32_u24 v110, 24, v110")
    for k in range(3): e(f"ds_read_b64 {R(BIAS+2*k,2)}, v110 offset:{B2F + 8*k}")
    for r in range(1, 8): e(f"v_add_f32 v100, v100, v{100+r}")
    e(f"v_mov_b32 v101, {0x358637bd:#x}\nv_fmac_f32 v101, {0x3b2aaaab:#x}, v100\nv_rcp_f32 v101, v101\nv_mov_b32 v102, {K_NINVK:#x}\nv_mul_f32 v101, v101, v102")
    for L in range(12): e(f"v_fma_f32 v{GBR+L}, v{GBR+L}, v101, v102")
    st(e, 'B5')
    for i in range(3):
        e(f"v_add_u32 v{100+i}, s{(33,34,37)[i]}, v{vB0}")
        for o in range(6):
            tp = 104 + 2*(o % 3)
            for jj in range(4): e(f"v_mul_f32 v{UNP(4*i+jj,o)}, v{UNP(4*i+jj,o)}, v{GBR+4*i+jj}")
            for a in range(2): e(f"v_cvt_pk_bf16_f32 v{tp+a}, v{UNP(4*i+2*a,o)}, v{UNP(4*i+2*a+1,o)}")
            e(f"ds_write_b64 v{100+i}, {R(tp,2)} offset:{1024*o}")
    e.wait(lgkm=0); e("s_barrier"); st(e, 'B6')

class Pass2:
    def __init__(self, c): self.c = c; self.U = units(c); self.f = 0; self.nT = 0; self.nw = 3; self.lead = 2
    NS = 48.0; NQ = 24.0
    def frag(self, sc, tm, text_fn, tmin):
        sl = W + 4*(self.f % self.nw); self.f += 1
        sc.add(max(tm - self.lead*4/self.NS + 0.0004, tmin), text_fn(sl)); return sl
    def G1(self, sc, t0, j, tmin=-99):
        for H in range(2):
            for t in range(3):
                tm = t0 + 4*(3*H + t)/self.NS; sl = self.frag(sc, tm, lambda s: wread2(s, self.U[j][H], t), tmin)
                for xz in range(4):
                    d = D + 32*(j % 2) + 8*xz + 4*H
                    sc.add(tm + xz/self.NS, f"v_mfma_f32_16x16x32_bf16 {R(d,4)}, {R(sl,4)}, {R(LN2+12*xz+4*t,4)}, {'0' if t == 0 else R(d,4)}")
    def G2(self, sc, t0, j, tmin=-99):
        for o in range(6):
            a = W2L + 6144*j + 1024*o
            tm = t0 + 4*o/self.NS; sl = self.frag(sc, tm, lambda s: f"ds_read_b128 {R(s,4)}, v{(vB0, vB1, vB2)[a >> 16]} offset:{a & 65535}", tmin)
            ct = D + 8*(o % 4) + 4
            if j == 0:
                for i in range(4): sc.add(max(tm - 3.5/self.NS, tmin), f"v_mov_b32 v{ct+i}, v{BIAS+o}")
            for xz in range(4):
                d = ACC + 24*xz + 4*o
                sc.add(tm + xz/self.NS, f"v_mfma_f32_16x16x32_bf16 {R(d,4)}, {R(D+32*(j%2)+8*xz,4)}, {R(sl,4)}, {R(ct,4) if j == 0 else R(d,4)}")
    def GELU(self, sc, t0, j):
        NQ, NS = self.NQ, self.NS
        for q in range(4):
            d = D + 32*(j % 2) + 8*q
            tq = t0 + (0.5 + (NQ - 8.0)*q/3)/NQ
            Lp = [p for p in range(4) if self.c.cls[self.U[j][p >> 1][p & 1]] == 'L']; Vp = [p for p in range(4) if p not in Lp]
            for k, p in enumerate(Lp):
                ts = round((tq + (k + 0.5)/NQ)*NS)/NS
                for z in range(2):
                    r = d + 2*p + z
                    sc.add(ts - 0.002, f"v_lshlrev_b32_sdwa v{r}, v{vONE}, v{r} {SDWA1}")
                    sc.add(ts + 0.002, f"ds_read_u16_d16{'_hi' if z else ''} v{r}, v{r}")
            els = [(d + 2*p + z) for p in Vp for z in range(2)]
            tr = []
            for r in els: tr.append(T2 + self.nT % 8); self.nT += 1
            stages = [lambda r, t: f"v_fmaak_f32 v{t}, v{r}, v{r}, {K_A:#x}", lambda r, t: f"v_mul_f32 v{t}, v{r}, v{t}", lambda r, t: f"v_exp_f32 v{t}, v{t}",
                      lambda r, t: f"v_add_f32 v{t}, 1.0, v{t}", lambda r, t: f"v_rcp_f32 v{t}, v{t}", lambda r, t: f"v_mul_f32 v{t}, v{r}, v{t}"]
            for si, f in enumerate(stages):
                for k, (r, t) in enumerate(zip(els, tr)): sc.add(tq + (0.1 + si + 0.6*k/max(len(els),1))/NQ, f(r, t))
            late = False
            for p in range(4):
                if p in Vp:
                    k = Vp.index(p); sc.add(tq + (7.2/NQ + 0.001*p if late else (6.3 + 0.1*k)/NQ), f"v_cvt_pk_bf16_f32 v{d+p}, v{tr[2*k]}, v{tr[2*k+1]}")
                else:
                    late = True; sc.add(tq + 7.2/NQ + 0.001*p, f"v_or_b32 v{d+p}, v{d+2*p}, v{d+2*p+1}")
    def rowbase(self, sc, t, tiles, xz, sreg):
        sc.add(t, f"s_add_u32 s{sreg}, s{sTILE+tiles[xz >> 1]}, {(xz & 1)*ROWB}")
    RW = [1,1,2,3,3,4,5,5,6,7,7,8,9,9,10,11]
    SL = (TMP, TMP+4, 252)
    def rtime(self, k): return self.RW[k] + (0.76 if k and self.RW[k-1] == self.RW[k] else 0.56)
    def resid_load(self, sc, tl, tiles, k):
        xz, r = k >> 2, k & 3; tmp = self.SL[k % 3]
        self.rowbase(sc, tl, tiles, xz, sT0)
        sc.add(tl, f"buffer_load_dwordx3 {R(tmp,3)}, v{vOP}, s[{sX}:{sX+3}], s{sT0} offen offset:{768*r}{self.c.x2_mod}")
    def resid(self, sc, b, tiles, k):
        xz, r = k >> 2, k & 3; tmp = self.SL[k % 3]; ta = b + self.rtime(k)
        for o in range(6):
            a = ACC + 24*xz + 4*o + r; tt = ta + 0.025*o
            sc.add(tt, f"v_and_b32 v{tmp+3}, 0xffff0000, v{tmp+o//2}" if o % 2 else f"v_lshlrev_b32 v{tmp+3}, 16, v{tmp+o//2}")
            sc.add(tt + 0.01, f"v_add_f32 v{a}, v{tmp+3}, v{a}")
        if k + 3 < 16: self.resid_load(sc, ta + 0.15, tiles, k + 3)
    def epilogue(self, sc, t0, tiles, span):
        for k in range(16):
            xz, r = k >> 2, k & 3; tmp = D + 32 + 8*(k % 4) + 4; tm = t0 + span*k/16
            for P in range(3): sc.add(tm, f"v_cvt_pk_bf16_f32 v{tmp+P}, v{ACC+24*xz+8*P+r}, v{ACC+24*xz+8*P+4+r}")
            self.rowbase(sc, tm, tiles, xz, sT0)
            sc.add(tm, f"buffer_store_dwordx3 {R(tmp,3)}, v{vOP}, s[{sOUT}:{sOUT+3}], s{sT0} offen offset:{768*r}{self.c.st_mod if tiles[0] == 3 else self.c.st_mod1}")
    def pre(self, e, st):
        sc = Sched()
        for k in range(3): self.resid_load(sc, 0.1*k, (3, 2), k)
        self.G1(sc, -0.5, 0); self.G1(sc, 0.5, 1); self.GELU(sc, 0, 0)
        late = [o for o in sc.ops if o[0] >= self.c.tpoll]; full = list(sc.ops)
        sc.check(sorted(full, key=lambda o: (o[0], o[1]))); nm = 0
        if self.c.prio2: e("s_setprio 3")
        for o in sorted(full, key=lambda o: (o[0], o[1])):
            if late and o is min(late, key=lambda o: (o[0], o[1])): early_poll(e); late = None
            e(o[2])
            if o[2].startswith('v_mfma'):
                nm += 1
                if self.c.prio2 and nm % 12 == 0: e(f"s_setprio {3 - (nm // 12) % 4}")
        e("s_setprio 0")
        sc.ops = []
        sync_early(e, self.c, st)
        self.GELU(sc, 1, 1)
        for k, g in enumerate(early_sums(self.c)):
            for l in g: sc.add(1.08 + 0.05*k, l)
        emit_prio(sc, e, 0)
    def main(self, e, st):
        sc = Sched()
        for pair in range(2):
            b = 13*pair; tiles = (3, 2) if pair == 0 else (0, 1)
            if pair == 1:
                self.G1(sc, b - 0.5, 0)
                self.epilogue(sc, b - 0.45, (3, 2), self.c.espan)
                self.G1(sc, b + 0.5, 1)
                for k in range(3): self.resid_load(sc, b - 0.6 + 0.3*k, tiles, k)
            for j in range(12):
                st(e, f'p{pair}j{j}', sc, b + j)
                if j == 11: st(e, f'p{pair}j12', sc, b + 12); st(e, f'p{pair}j12h', sc, b + 12.5)
                if pair == 1 or j >= 2: self.GELU(sc, b + j, j)
                if pair == 0 and self.c.pf and self.c.pf <= j < self.c.pf + 6:
                    k = j - self.c.pf
                    sc.add(b + j + 0.93, f"s_add_u32 s{sT0+2}, s{sLNO}, {(k // 3)*8*6144 + 2048*(k % 3)}")
                    sc.add(b + j + 0.93, f"buffer_load_dword v0, v7, s[{sWS}:{sWS+3}], s{sT0+2} offen")
                if j == 10 and pair == 0:
                    for k, g in enumerate(ln_mem("load", 0, LN2) + ln_mem("load", 1, LN2+24)):
                        for l in g: sc.add(b + 11.003 + 0.04*k, l)
                self.G2(sc, b + j + 1, j, tmin=0.9)
                for k in range(16):
                    if self.RW[k] == j + 1: self.resid(sc, b, tiles, k)
                if j + 2 < 12: self.G1(sc, b + j + 1.5, j + 2)
        st(e, 'epi', sc, 25.5)
        self.epilogue(sc, 25.52, (0, 1), 0.3)
        emit_prio(sc, e, self.c.prio2)

def kernel(name, c):
    e = Emit(); e.merge = 0
    XMOD[0] = c.x_mod
    st = Stamps(c.stamp); st.phase = c.diag_phase
    st(e, 'rt0', real=True); st(e, 'entry')
    if c.diag_pad: e.raw("s_memrealtime s[68:69]")
    prologue(e, c, st)
    sc = Sched()
    P = 24 + c.gap
    for s in range(4):
        base = P*s; LN = LNA if s < 3 else LN2
        if s:
            group(sc, base - c.gap + 0.05, ["@wait vm=0", "s_barrier"]); st(e, f'go{s}', sc, base - c.gap + 0.05)
            conv(sc, s, base - c.gap + 0.06 + 2*c.cdt, c.cdt)
        layernorm(sc, LN, base)
        st(e, f'ln{s}', sc, base + 2.0)
        gemm1(sc, c, LN, base)
        extra = []
        if s < 3:
            extra.append((c.d0 - 0.05, ["s_barrier"]))
            extra += [(c.d0 + c.dsp*k, x) for k, x in enumerate(sum((dma_ops(t) for t in range(4*s+5, 4*s+9)), []))]
            extra.append((3.1, ticket(s)))
        if s < 2 and not c.nospill: extra += [(c.sp0 + c.ssp*k, x) for k, x in enumerate(ln_mem("store", s, LN, c.sp_mod))]
        if s == 3:
            extra += [(2.5 + 1.5*k, x) for k, x in enumerate(w2_loads(c))]
            extra += [(3.2 + 1.5*k, x) for k, x in enumerate(setup2(c))]
        for t, g in extra: group(sc, base + t + 0.004, g)
        st(e, f'gemm{s}', sc, base + 24.0)
    e.merge = c.merge
    emit_prio(sc, e, c.prio1)
    e.merge = 0
    st(e, 'drain')
    sync1(e, c, st)
    p = Pass2(c)
    e.merge = c.merge
    st(e, 'p0'); p.pre(e, st)
    e.merge = 0
    sync2(e, c, st)
    e.merge = c.merge
    p.main(e, st)
    if c.diag_pad:
        st(e, 'fin')
        e.raw("s_waitcnt vmcnt(0) lgkmcnt(0)")
        if c.diag_phase: e.raw("s_sub_u32 s72, s74, s72\ns_mul_i32 s72, s72, 4\ns_add_u32 s68, s68, s72")
        e.raw(f"L_pad:\ns_memrealtime s[70:71]\ns_waitcnt lgkmcnt(0)\ns_sub_u32 s70, s70, s68\ns_cmp_lt_i32 s70, {c.diag_pad}\ns_cbranch_scc1 L_pad")
    st(e, 'end'); st(e, 'rt1', real=True)
    if c.dbg is not None: st.flush_dbg(e, sDBG, sWAVE, c.dbg)
    else: st.flush(e, sWS, sWAVE, 0)
    e.label("L_end")
    e.raw("s_endpgm")
    return khead(name) + e.text() + "\n" + kdesc(name), st.names

if __name__ == '__main__':
    import sys
    HEADER = open('standalone__modern_conv_block_slak__vision.s.ref').read().split('; Override launch')[0]
    out = sys.argv[1] if len(sys.argv) > 1 else 'standalone__modern_conv_block_slak__vision.s'
    c = Cfg()
    for k, v in eval('dict(' + (sys.argv[2] if len(sys.argv) > 2 else '') + ')').items(): setattr(c, k, v)
    body, names = kernel('standalone__modern_conv_block_slak__vision_kernel', c)
    s = HEADER + ("; @launch kernel=standalone__modern_conv_block_slak__vision_kernel grid=(256,1,1) block=(512,1,1) lds=163840\n" if c.aslist else "; @launch grid=(256,1,1) block=(512,1,1) lds=163840\n") + '.amdgcn_target "amdgcn-amd-amdhsa--gfx950"\n.text\n' + body
    if c.stamp: s += f'; STAMPS {names!r}\n'
    open(out, 'w').write(s)
```
